```python
import torch

def _softmax(x, axis=-1):
    return torch.softmax(x, dim=axis)
def _gelu(x):
    return torch.nn.functional.gelu(x, approximate="tanh")
def _silu(x):
    return torch.nn.functional.silu(x)
def _sigmoid(x):
    return torch.sigmoid(x)
def _layernorm(x, axis=-1, eps=1e-5):
    m = x.mean(dim=axis, keepdim=True)
    v = x.var(dim=axis, keepdim=True, unbiased=False)
    return (x - m) / torch.sqrt(v + eps)
def _scatter_add(tgt, idx, src, axis=0):
    return tgt.clone().index_add_(axis, idx, src)
def _segment_sum(src, seg, n):
    out = torch.zeros((n,) + src.shape[1:], dtype=src.dtype)
    return out.index_add_(0, seg, src)
def _pad(x, pw):
    flat = tuple(v for pair in reversed(pw) for v in pair)
    return torch.nn.functional.pad(x, flat)

kernel_name = 'recurrent_scan__gqa_block_cached__mixer_channel_mlp__prompt'

def setup_inputs():

    _w = (lambda a: (lambda t: t.to(torch.bfloat16) if t.is_floating_point() else t)(torch.as_tensor(a)))
    def _A_setup():
        B, Sq, D = 1, 2048, 640
        Hq, Hkv, Sk, Dh = 32, 32, 2048, 128
        assert Hq % Hkv == 0, (Hq, Hkv)
        return {
            "x": _w((lambda *s: torch.randn(*s, dtype=torch.bfloat16) * 0.05)(B, Sq, D)),
            "k_cache": _w((lambda *s: torch.randn(*s, dtype=torch.bfloat16) * 1.6)(B, Hkv, Sk, Dh)),
            "v_cache": _w((lambda *s: torch.randn(*s, dtype=torch.bfloat16) * 0.8)(B, Hkv, Sk, Dh)),
            "wq": _w((lambda *s: torch.randn(*s, dtype=torch.bfloat16) * 1.6)(D, Hq * Dh) * (D ** -0.5)),
            "wo": _w((lambda *s: torch.randn(*s, dtype=torch.bfloat16) * 0.8)(Hq * Dh, D) * ((Hq * Dh) ** -0.5)),
        }
    _A_in = _A_setup()

    def _B_setup():
        B, S, D, F = 1, 2048, 640, 1728
        return {
            "x": _w((lambda *s: torch.randn(*s, dtype=torch.bfloat16) * 0.05)(B, S, D)),
            "w1": _w((lambda *s: torch.randn(*s, dtype=torch.bfloat16) * 3.2)(D, F) * (D ** -0.5)),
            "b1": _w((lambda *s: torch.randn(*s, dtype=torch.bfloat16) * 1.6)(F)),
            "w2": _w((lambda *s: torch.randn(*s, dtype=torch.bfloat16) * 0.2)(F, D) * (F ** -0.5)),
            "b2": _w((lambda *s: torch.randn(*s, dtype=torch.bfloat16) * 0.2)(D)),
        }
    _B_in = _B_setup()

    return {
        "A_x": _A_in["x"],
        "A_k_cache": _A_in["k_cache"],
        "A_v_cache": _A_in["v_cache"],
        "A_wq": _A_in["wq"],
        "A_wo": _A_in["wo"],
        "B_x": _B_in["x"],
        "B_w1": _B_in["w1"],
        "B_b1": _B_in["b1"],
        "B_w2": _B_in["w2"],
        "B_b2": _B_in["b2"],
    }

def reference(A_x, A_k_cache, A_v_cache, A_wq, A_wo, B_x, B_w1, B_b1, B_w2, B_b2):
    def _A_ref(x, k_cache, v_cache, wq, wo):
        B, Sq, D = x.shape
        Hq, Dh = 32, 128
        Hkv = k_cache.shape[1]
        rep = Hq // Hkv
        q = (lambda x, *d: x.permute(*d))((x @ wq).reshape(B, Sq, Hq, Dh), 0, 2, 1, 3)
        k = (lambda x, n, axis: torch.repeat_interleave(x, n, dim=axis))(k_cache, rep, axis=1)
        v = (lambda x, n, axis: torch.repeat_interleave(x, n, dim=axis))(v_cache, rep, axis=1)
        scores = torch.einsum("bhqd,bhkd->bhqk", q, k) * (Dh ** -0.5)
        p = _softmax(scores, axis=-1)
        o = torch.einsum("bhqk,bhkd->bhqd", p, v)
        return (lambda x, *d: x.permute(*d))(o, 0, 2, 1, 3).reshape(B, Sq, Hq * Dh) @ wo

    def _B_ref(x, w1, b1, w2, b2):
        y = _layernorm(x, axis=-1)
        h = _gelu(torch.einsum("bsd,df->bsf", y, w1) + b1)
        return torch.einsum("bsf,fd->bsd", h, w2) + b2

    x = A_x
    xn = _layernorm(x, axis=-1)
    s = _A_ref(xn, A_k_cache, A_v_cache, A_wq, A_wo)
    g = _silu(_B_ref(xn, B_w1, B_b1, B_w2, B_b2))
    return x + s * g
```

```python
import struct


class Reg:
    __slots__ = ("kind", "idx", "n")

    def __init__(self, kind, idx, n=1):
        self.kind, self.idx, self.n = kind, idx, n
        lim = {"v": 256, "a": 256, "s": 104}[kind]
        assert 0 <= idx and idx + n <= lim, (kind, idx, n)
        if n > 1 and kind in "va":
            assert idx % 2 == 0, ("vgpr tuple must be even aligned", kind, idx, n)
        if kind == "s" and n == 2:
            assert idx % 2 == 0, ("sgpr pair", idx)
        if kind == "s" and n >= 4:
            assert idx % 4 == 0, ("sgpr quad", idx)

    def __str__(self):
        if self.n == 1:
            return f"{self.kind}{self.idx}"
        return f"{self.kind}[{self.idx}:{self.idx + self.n - 1}]"

    __repr__ = __str__

    def regs(self):
        return {(self.kind, self.idx + i) for i in range(self.n)}

    def __getitem__(self, i):
        if isinstance(i, slice):
            st = i.start or 0
            en = self.n if i.stop is None else i.stop
            return Reg(self.kind, self.idx + st, en - st)
        assert 0 <= i < self.n, (self, i)
        return Reg(self.kind, self.idx + i, 1)

    def sub(self, off, n=1):
        assert off + n <= self.n, (self, off, n)
        return Reg(self.kind, self.idx + off, n)


def v(i, n=1):
    return Reg("v", i, n)


def a(i, n=1):
    return Reg("a", i, n)


def s(i, n=1):
    return Reg("s", i, n)


def f2u(x):
    return struct.unpack("<I", struct.pack("<f", x))[0]


SPECIAL = {"vcc": {("s", "vcc")}, "exec": {("s", "exec")}, "m0": {("s", "m0")}, "scc": {("s", "scc")}}
INLINE_F = {0.5: "0.5", -0.5: "-0.5", 1.0: "1.0", -1.0: "-1.0", 2.0: "2.0", -2.0: "-2.0", 4.0: "4.0", -4.0: "-4.0"}


class Neg:
    def __init__(self, r, neg=True, abs_=False):
        self.r, self.neg, self.abs_ = r, neg, abs_

    def __str__(self):
        t = str(self.r)
        if self.abs_:
            t = f"|{t}|"
        if self.neg:
            t = "-" + t
        return t


def fmt(o):
    if isinstance(o, (Reg, Neg)):
        return str(o)
    if isinstance(o, bool):
        raise TypeError
    if isinstance(o, int):
        if -16 <= o <= 64:
            return str(o)
        return hex(o & 0xFFFFFFFF)
    if isinstance(o, float):
        if o in INLINE_F:
            return INLINE_F[o]
        if o == 0.0:
            return "0"
        return hex(f2u(o))
    return str(o)


def regs_of(o):
    if isinstance(o, Reg):
        return o.regs()
    if isinstance(o, Neg):
        return regs_of(o.r)
    if isinstance(o, str) and o in SPECIAL:
        return set(SPECIAL[o])
    return set()


TRANS = ("v_exp_f32", "v_log_f32", "v_rcp_f32", "v_rsq_f32", "v_sqrt_f32", "v_sin_f32", "v_cos_f32", "v_rcp_iflag_f32")
NO_DST_S = ("s_cmp", "s_waitcnt", "s_barrier", "s_nop", "s_branch", "s_cbranch", "s_setprio", "s_endpgm",
            "s_setpc", "s_sleep", "s_bitcmp")
SCC_WRITERS = ("s_add_", "s_sub_", "s_addc", "s_subb", "s_lshl", "s_lshr", "s_ashr", "s_and_", "s_or_", "s_xor_",
               "s_andn2", "s_orn2", "s_cmp", "s_min", "s_max", "s_not", "s_bfe", "s_addk", "s_bitcmp", "s_mul_hi_xx")


class Inst:
    __slots__ = ("op", "ops", "mods", "w", "r", "cls", "text", "cost", "note", "vm")

    def __init__(self, op, ops, mods="", note=""):
        self.op, self.ops, self.mods, self.note = op, list(ops), mods, note
        w, r = set(), set()
        o = self.ops
        cls = "other"
        if op.startswith("v_mfma"):
            cls = "mfma"
            w |= regs_of(o[0])
            for x in o[1:]:
                r |= regs_of(x)
        elif op.startswith("v_cmp"):
            cls = "valu"
            w |= regs_of(o[0])
            for x in o[1:]:
                r |= regs_of(x)
            if op.startswith("v_cmpx"):
                w |= SPECIAL["exec"]
        elif op.startswith("v_"):
            cls = "trans" if op in TRANS else "valu"
            w |= regs_of(o[0])
            rest = o[1:]
            if op in ("v_add_co_u32", "v_sub_co_u32", "v_addc_co_u32"):
                w |= regs_of(o[1])
                rest = o[2:]
            for x in rest:
                r |= regs_of(x)
            if op.startswith(("v_fmac", "v_writelane", "v_dot2c", "v_pk_fmac")):
                r |= regs_of(o[0])
            if op.startswith(("v_permlane32_swap", "v_permlane16_swap")):
                w |= regs_of(o[1])
                r |= regs_of(o[0])
            if "dpp" in mods or "row_" in mods or "quad_perm" in mods:
                r |= regs_of(o[0])
        elif op.startswith("ds_"):
            cls = "ds"
            if op.startswith(("ds_read", "ds_bpermute", "ds_permute", "ds_swizzle")):
                w |= regs_of(o[0])
                for x in o[1:]:
                    r |= regs_of(x)
            else:
                for x in o:
                    r |= regs_of(x)
        elif op.startswith(("buffer_", "global_")):
            cls = "vmem"
            is_lds = " lds" in (" " + mods) or op.startswith("global_load_lds")
            if "load" in op and not is_lds:
                w |= regs_of(o[0])
                for x in o[1:]:
                    r |= regs_of(x)
            elif "atomic" in op and "sc0" in mods:
                w |= regs_of(o[0])
                for x in o:
                    r |= regs_of(x)
            else:
                for x in o:
                    r |= regs_of(x)
                if is_lds:
                    r |= SPECIAL["m0"]
                    cls = "dma"
        elif op.startswith(("s_load", "s_buffer_load", "s_memtime", "s_memrealtime")):
            cls = "smem"
            w |= regs_of(o[0])
            for x in o[1:]:
                r |= regs_of(x)
        elif op.startswith("s_"):
            cls = "salu"
            if op.startswith(NO_DST_S):
                for x in o:
                    r |= regs_of(x)
                if op.startswith("s_cbranch_vcc"):
                    r |= SPECIAL["vcc"]
                if op.startswith("s_cbranch_scc"):
                    r |= SPECIAL["scc"]
                if op.startswith("s_cbranch_exec"):
                    r |= SPECIAL["exec"]
            else:
                w |= regs_of(o[0])
                for x in o[1:]:
                    r |= regs_of(x)
                if op.startswith(("s_cselect", "s_addc", "s_subb")):
                    r |= SPECIAL["scc"]
                if op.startswith(("s_addk", "s_mulk")):
                    r |= regs_of(o[0])
                if "saveexec" in op:
                    w |= SPECIAL["exec"]
                    r |= SPECIAL["exec"]
            if op.startswith(SCC_WRITERS):
                w |= SPECIAL["scc"]
        self.w, self.r, self.cls = w, r, cls
        t = op
        if o:
            t += " " + ", ".join(fmt(x) for x in o)
        if mods:
            t += " " + mods
        self.text = t
        self.cost = {"trans": 8, "mfma": 8, "dma": 16}.get(cls, 4)

    def __str__(self):
        return self.text + (f"    ; {self.note}" if self.note else "")


class Label:
    def __init__(self, name):
        self.name = name
        self.cls = "label"
        self.w = self.r = set()
        self.op = "label"
        self.cost = 0

    def __str__(self):
        return f"{self.name}:"


class Raw:
    def __init__(self, text):
        self.text = text
        self.cls = "label"
        self.w = self.r = set()
        self.op = "raw"
        self.cost = 0

    def __str__(self):
        return self.text


class Block:
    def __init__(self):
        self.ins = []

    def i(self, op, *ops, mods="", note=""):
        x = Inst(op, ops, mods, note)
        self.ins.append(x)
        return x

    def add(self, x):
        if isinstance(x, (list, tuple)):
            for y in x:
                self.add(y)
        elif isinstance(x, Block):
            self.ins.extend(x.ins)
        else:
            self.ins.append(x)

    def label(self, name):
        self.ins.append(Label(name))

    def raw(self, text):
        self.ins.append(Raw(text))

    def comment(self, text):
        self.ins.append(Raw("; " + text))

    def wait(self, vm=None, lgkm=None):
        parts = []
        if vm is not None:
            assert 0 <= vm <= 63
            parts.append(f"vmcnt({vm})")
        if lgkm is not None:
            assert 0 <= lgkm <= 15
            parts.append(f"lgkmcnt({lgkm})")
        x = Inst("s_waitcnt", [" ".join(parts)])
        x.note = ""
        self.ins.append(x)
        return x

    def nop(self, n):
        while n > 0:
            m = min(n, 16)
            self.ins.append(Inst("s_nop", [m - 1]))
            n -= m

    def text(self):
        out = []
        for x in self.ins:
            if isinstance(x, (Label, Raw)):
                out.append(str(x))
            else:
                out.append("    " + str(x))
        return "\n".join(out) + "\n"


def I(op, *ops, mods="", note=""):
    return Inst(op, ops, mods, note)


def W(vm=None, lgkm=None):
    b = Block()
    return b.wait(vm, lgkm)


def mfma_passes(x):
    if "32x32x16" in x.op or "32x32x8" in x.op:
        return 8
    if "16x16x32" in x.op or "16x16x16" in x.op:
        return 4
    raise ValueError(x.op)


def check(trace, name="", verbose=True, init_pending=None):
    probs = []
    ins = [x for x in trace if x.cls != "label"]
    pos = []
    p = 0
    for x in ins:
        pos.append(p)
        p += (int(x.ops[0]) + 1) if x.op == "s_nop" else 1
    last_mfma_w = {}
    last_mfma_c = {}
    last_valu_w = {}
    last_trans_w = {}
    last_valu_sw = {}
    last_store_data = {}
    last_m0 = -100
    vmq, lgq = [], []
    pend = {}

    def err(x, msg):
        probs.append(f"{name}: [{x.text}] {msg}")

    for n, x in enumerate(ins):
        P = pos[n]
        if x.op == "s_waitcnt":
            t = x.ops[0]
            for part in t.split():
                if part.startswith("vmcnt"):
                    k = int(part[6:-1])
                    while len(vmq) > k:
                        e = vmq.pop(0)
                        for r in e:
                            if pend.get(r) and pend[r][1] is e:
                                del pend[r]
                elif part.startswith("lgkmcnt"):
                    k = int(part[8:-1])
                    if any(e[0] == "smem" for e in lgq) and k != 0:
                        pass
                    while len(lgq) > k:
                        e = lgq.pop(0)
                        for r in e[1]:
                            if pend.get(r) and pend[r][1] is e:
                                del pend[r]
            continue
        for r in (x.r | x.w):
            if r in pend:
                same = (r in x.w and r not in x.r and ((pend[r][0] == "vm" and x.cls == "vmem") or
                                                       (pend[r][0] == "lg" and x.cls == "ds")))
                if not same:
                    err(x, f"touches {r} with a load still pending")
        if x.cls == "mfma":
            d = regs_of(x.ops[0])
            aa, bb, cc = regs_of(x.ops[1]), regs_of(x.ops[2]), regs_of(x.ops[3])
            for r in aa | bb:
                if r in last_mfma_w:
                    q, ps, y = last_mfma_w[r]
                    need = {4: 8, 8: 12}[ps]
                    if P - q - 1 < need:
                        err(x, f"A/B {r} written by mfma {P - q - 1} states ago (need {need})")
            for r in cc:
                if r in last_mfma_w:
                    q, ps, y = last_mfma_w[r]
                    same = regs_of(y.ops[0]) == cc and mfma_passes(x) == ps
                    need = 0 if same else {4: 6, 8: 10}[ps]
                    if P - q - 1 < need:
                        err(x, f"C {r} overlaps mfma D {P - q - 1} states ago (need {need})")
            for r in d - cc:
                if r in last_mfma_w:
                    q, ps, y = last_mfma_w[r]
                    need = {4: 6, 8: 10}[ps]
                    if P - q - 1 < need and regs_of(y.ops[0]) != d:
                        err(x, f"D {r} WAW with mfma {P - q - 1} states ago")
            for r in aa | bb | cc:
                if r in last_valu_w and P - last_valu_w[r] - 1 < 2:
                    err(x, f"operand {r} written by VALU {P - last_valu_w[r] - 1} states ago (need 2)")
        else:
            for r in (x.r | x.w):
                if r in last_mfma_w and x.cls in ("valu", "trans", "ds", "vmem", "dma"):
                    q, ps, y = last_mfma_w[r]
                    need = {4: 8, 8: 12}[ps]
                    if P - q - 1 < need:
                        err(x, f"{r} written by mfma {P - q - 1} states ago (need {need})")
            if x.cls in ("valu", "trans"):
                for r in x.w:
                    if r in last_mfma_c:
                        q, ps = last_mfma_c[r]
                        need = {4: 3, 8: 7}[ps]
                        if P - q - 1 < need:
                            err(x, f"overwrites mfma SrcC {r} after {P - q - 1} states (need {need})")
        if x.cls in ("valu",):
            for r in x.r:
                if r in last_trans_w and P - last_trans_w[r] - 1 < 1:
                    err(x, f"uses trans result {r} too early")
        if x.cls in ("valu", "trans"):
            for r in x.r:
                if r[0] == "s" and r in last_valu_sw and r[1] != "exec":
                    if P - last_valu_sw[r] - 1 < 2 and not x.op.startswith(("v_addc_co",)):
                        err(x, f"reads sgpr {r} written by VALU too early")
            if x.op.startswith(("v_readlane", "v_readfirstlane")):
                for r in x.r:
                    if r in last_valu_w and P - last_valu_w[r] - 1 < 1:
                        err(x, f"readlane of {r} too early")
            if x.op.startswith("v_permlane") or "row_" in x.mods or "quad_perm" in x.mods:
                for r in x.r:
                    if r in last_valu_w and P - last_valu_w[r] - 1 < 2:
                        err(x, f"permlane/dpp read of {r} too early")
            for r in x.w:
                if r in last_store_data and P - last_store_data[r] - 1 < 2:
                    err(x, f"overwrites wide store data {r} too early")
        if x.cls in ("vmem", "dma"):
            for r in x.r:
                if r[0] == "s" and r in last_valu_sw and P - last_valu_sw[r] - 1 < 5:
                    err(x, f"vmem reads sgpr {r} written by VALU too early")
            if x.cls == "dma" and P - last_m0 - 1 < 1:
                err(x, "DMA right after m0 write")
        if x.cls == "ds":
            for r in x.w:
                if r in last_store_data and P - last_store_data[r] - 1 < 1:
                    err(x, f"ds overwrites wide store data {r} too early")
        if x.cls == "mfma":
            ps = mfma_passes(x)
            for r in regs_of(x.ops[0]):
                last_mfma_w[r] = (P, ps, x)
            for r in regs_of(x.ops[3]):
                last_mfma_c[r] = (P, ps)
        else:
            for r in x.w:
                last_mfma_w.pop(r, None) if False else None
        if x.cls in ("valu", "trans"):
            for r in x.w:
                if r[0] == "s":
                    last_valu_sw[r] = P
                else:
                    last_valu_w[r] = P
                    if x.cls == "trans":
                        last_trans_w[r] = P
                    else:
                        last_trans_w.pop(r, None)
        if x.cls == "salu":
            for r in x.w:
                last_valu_sw.pop(r, None)
            if ("s", "m0") in x.w:
                last_m0 = P
        if x.cls in ("vmem", "dma"):
            e = list(x.w)
            vmq.append(e)
            for r in e:
                pend[r] = ("vm", e)
            if "store" in x.op and ("x4" in x.op or "x3" in x.op):
                for r in regs_of(x.ops[0]) if x.op.startswith("buffer") else regs_of(x.ops[1]):
                    last_store_data[r] = P
            if len(vmq) > 63:
                err(x, "more than 63 vm ops outstanding")
        if x.cls == "ds":
            e = ("ds", list(x.w))
            lgq.append(e)
            for r in e[1]:
                pend[r] = ("lg", e)
        if x.cls == "smem":
            e = ("smem", list(x.w))
            lgq.append(e)
            if x.op != "s_load_dword":
                lgq.append(("smem", []))
            for r in e[1]:
                pend[r] = ("lg", e)
    if verbose:
        for q in probs[:8]:
            print("HAZARD", q[:200])
        if len(probs) > 8:
            print(f"... {len(probs)} problems")
    return probs
```

```python
from asmgen import *

MF = "v_mfma_f32_16x16x32_bf16"
vKD0, vKD1, vVD0, vVD1 = v(1), v(2), v(3), v(4)
vKA = [v(5 + i) for i in range(4)]
vVA = [v(9 + i) for i in range(8)]
L = [v(17 + i) for i in range(4)]
NM = [v(24 + 4 * i, 4) for i in range(4)]
S = [[v(40 + (qt * 2 + kt) * 4, 4) for kt in range(2)] for qt in range(4)]
P = [v(72 + 4 * qt, 4) for qt in range(4)]
Q = [[v(112 + (qt * 4 + ks) * 4, 4) for ks in range(4)] for qt in range(4)]
O = [[a((dt * 4 + qt) * 4, 4) for qt in range(4)] for dt in range(8)]
KF = [[a(128 + (kt * 4 + ks) * 4, 4) for ks in range(4)] for kt in range(2)]
VF = [a(160 + dt * 4, 4) for dt in range(8)]
sKSRD, sVSRD = s(4, 4), s(8, 4)
sTOFF = s(36)
sMK, sMV = s(37), s(38)
KRING, VRING = 0, 65536


def mf_qk(qt, kt, ks):
    return I(MF, S[qt][kt], KF[kt][ks], Q[qt][ks], NM[qt] if ks == 0 else S[qt][kt])


def mf_pv(qt, dt):
    return I(MF, O[dt][qt], VF[dt], P[qt], O[dt][qt])


def v_read(slot, r):
    dt, x = r >> 1, r & 1
    return I("ds_read_b64_tr_b16", VF[dt].sub(2 * x, 2), vVA[dt], mods=f"offset:{slot * 8192 + x * 4096}")


def k_read(slot, n):
    kt, ks = n >> 2, n & 3
    return I("ds_read_b128", KF[kt][ks], vKA[ks], mods=f"offset:{slot * 8192 + kt * 4096}")


def dma_k(n):
    return I("buffer_load_dwordx4", (vKD0, vKD1)[n], sKSRD, sTOFF, mods=f"offen offset:{1024 * n} lds")


def dma_v(n):
    return I("buffer_load_dwordx4", (vVD0, vVD1)[n], sVSRD, sTOFF, mods=f"offen offset:{1024 * n} lds")


def sreg(h, e):
    return S[2 * h + (e >> 3)][(e >> 2) & 1][e & 3]


def sm_exp(h, e):
    return I("v_exp_f32", sreg(h, e), sreg(h, e))


def sm_add(h, e):
    qt = 2 * h + (e >> 3)
    return I("v_add_f32", L[qt], L[qt], sreg(h, e))


def sm_cvt(h, k):
    qt = 2 * h + (k >> 2)
    return I("v_cvt_pk_bf16_f32", P[qt][k & 3], sreg(h, 2 * k), sreg(h, 2 * k + 1))


def mfma_list(qk_order="tile", pv_order="qt"):
    out = []

    def qk(h):
        r = []
        for qt in (2 * h, 2 * h + 1):
            for kt in range(2):
                for ks in range(4):
                    r.append(mf_qk(qt, kt, ks))
        return r

    def pv(h):
        r = []
        if pv_order == "qt":
            for qt in (2 * h, 2 * h + 1):
                for dt in range(8):
                    r.append(mf_pv(qt, dt))
        else:
            for dt in range(8):
                for qt in (2 * h, 2 * h + 1):
                    r.append(mf_pv(qt, dt))
        return r
    return qk(0) + pv(1) + qk(1) + pv(0)


DEF = dict(
    e0=9, e1=41,
    pv_order="dt",
    vread_gaps=[18, 20, 22, 24, 26, 28, 30, 32, 34, 36, 38, 40, 42, 44, 46, 48],
    kread_gaps=[49, 50, 52, 54, 56, 58, 60, 62],
    lg_waits=[(3, 0), (47, 7), (55, 4)], last_wait=(63, 4),
    bar_gap=0, dma_gaps=[2, 6, 10, 14], vm=20, toff_gap=15,
    exp=True, ds=True, dma=True, bar=True, waits=True,
)


def iteration(u, opts=None, g2=True, sm1_prev=True, sm1_cur=True):
    o = dict(DEF)
    if opts:
        o.update(opts)
    N = 64
    mem = {g: [] for g in range(N)}
    sal = {g: [] for g in range(N)}
    val = {g: [] for g in range(N)}
    if o["exp"]:
        for h, g0 in ((0, o["e0"]), (1, o["e1"])):
            for e in range(16):
                ge = g0 + 2 * e
                cur = ge < N
                if not (h == 1 and not ((cur and sm1_cur) or (not cur and sm1_prev))):
                    val[ge % N].insert(0, sm_exp(h, e))
                ga = ge + 1
                cur = ga < N
                if h == 1 and not ((cur and sm1_cur) or (not cur and sm1_prev)):
                    continue
                val[ga % N].append(sm_add(h, e))
                if e & 1:
                    val[ga % N].append(sm_cvt(h, e >> 1))
    if o["ds"]:
        for r, g in enumerate(o["vread_gaps"]):
            mem[g].append(v_read(u, r))
        for n, g in enumerate(o["kread_gaps"]):
            mem[g % N].append(k_read((u + 1) % 8, n))
    if o["waits"] and o["ds"]:
        for g, cnt in o["lg_waits"]:
            sal[g].insert(0, W(lgkm=cnt))
        g, cnt = o["last_wait"]
        sal[g].insert(0, W(vm=o["vm"] if o["bar"] else None, lgkm=cnt))
    if o["bar"]:
        sal[o["bar_gap"]].append(I("s_barrier"))
    if o["dma"]:
        g = o["dma_gaps"]
        sal[(g[0] - 1) % N].append(I("s_add_u32", "m0", sMK, ((u + 7) % 8) * 8192))
        mem[g[0]].insert(0, dma_k(0))
        mem[g[1]].insert(0, dma_k(1))
        sal[(g[2] - 1) % N].append(I("s_add_u32", "m0", sMV, ((u + 7) % 8) * 8192))
        mem[g[2]].insert(0, dma_v(0))
        mem[g[3]].insert(0, dma_v(1))
        sal[o["toff_gap"]].append(I("s_add_u32", sTOFF, sTOFF, 8192))
    b = Block()
    ml = mfma_list(pv_order=o["pv_order"])
    for g in range(N):
        if not (16 <= g < 32 and not g2):
            b.add(ml[g])
        else:
            b.add(I("s_nop", 0))
        b.add(sal[g])
        b.add(mem[g])
        b.add(val[g])
    return b


def addr_setup(b, vlane, vwave, tmp):
    t0, t1, t2, t3 = tmp[:4]
    b.i("v_lshrrev_b32", t0, 4, vlane)
    b.i("v_lshl_add_u32", t0, vwave, 3, t0)
    b.i("v_and_b32", t1, 15, vlane)
    for n, (kd, vd) in enumerate(((vKD0, vVD0), (vKD1, vVD1))):
        b.i("v_add_u32", t3, 4 * n, t0)
        b.i("v_and_b32", t2, 15, t3)
        b.i("v_xor_b32", t2, t1, t2)
        b.i("v_lshlrev_b32", t2, 4, t2)
        b.i("v_lshl_add_u32", kd, t0, 8, t2)
        b.i("v_and_b32", t2, 7, t3)
        b.i("v_lshlrev_b32", t2, 1, t2)
        b.i("v_xor_b32", t2, t1, t2)
        b.i("v_lshlrev_b32", t2, 4, t2)
        b.i("v_lshl_add_u32", vd, t0, 8, t2)
    b.i("v_lshrrev_b32", t0, 4, vlane)
    b.i("v_xor_b32", t2, t0, t1)
    b.i("v_lshlrev_b32", t2, 4, t2)
    b.i("v_lshl_add_u32", vKA[0], t1, 8, t2)
    for ks in range(1, 4):
        b.i("v_xor_b32", vKA[ks], 64 * ks, vKA[0])
    b.i("v_lshrrev_b32", t2, 2, t1)
    b.i("v_lshl_add_u32", t2, t0, 2, t2)
    b.i("v_and_b32", t3, 7, t2)
    b.i("v_lshlrev_b32", t3, 5, t3)
    b.i("v_lshl_add_u32", t3, t2, 8, t3)
    b.i("v_and_b32", t2, 3, t1)
    b.i("v_lshl_add_u32", t3, t2, 3, t3)
    b.i("v_add_u32", vVA[0], VRING, t3)
    for dt in range(1, 8):
        b.i("v_xor_b32", vVA[dt], 32 * dt, vVA[0])
```

```python
from asmgen import *

NAME = "recurrent_scan__gqa_block_cached__mixer_channel_mlp__prompt"

HEADER = """; Kernarg layout (104 bytes, ptrs only, base s[0:1]):
"""


def kd(label, nvgpr, accum, nsgpr=102, extra=""):
    return f""".amdhsa_kernel {label}
  .amdhsa_next_free_vgpr {nvgpr}
  .amdhsa_next_free_sgpr {nsgpr}
  .amdhsa_accum_offset {accum}
  .amdhsa_group_segment_fixed_size 0
  .amdhsa_kernarg_size 104
  .amdhsa_user_sgpr_count 2
  .amdhsa_user_sgpr_kernarg_segment_ptr 1
  .amdhsa_system_sgpr_workgroup_id_x 1
{extra}.end_amdhsa_kernel
"""


def assemble_file(kernels):
    out = [HEADER]
    seen = []
    for k in kernels:
        kn = "" if k["label"] == NAME + "_kernel" else f"kernel={k['label']} "
        out.append(f"; @launch {kn}grid=({k['grid']},1,1) block=({k['block']},1,1) lds={k['lds']}\n")
    out.append('.amdgcn_target "amdgcn-amd-amdhsa--gfx950"\n.text\n')
    for k in kernels:
        if k["label"] in seen:
            continue
        seen.append(k["label"])
        lb = k["label"]
        out.append(f".globl {lb}\n.p2align 8\n.type {lb},@function\n{lb}:\n")
        out.append(k["body"])
    out.append('.section .rodata,"a"\n.p2align 6\n')
    seen = []
    for k in kernels:
        if k["label"] in seen:
            continue
        seen.append(k["label"])
        out.append(kd(k["label"], k["nvgpr"], k["accum"], k.get("nsgpr", 102), k.get("extra", "")))
        out.append(".p2align 6\n")
    return "".join(out)


def srd(b, dst, base, nbytes):
    b.i("s_mov_b32", dst[0], base[0])
    b.i("s_mov_b32", dst[1], base[1])
    b.i("s_mov_b32", dst[2], nbytes)
    b.i("s_mov_b32", dst[3], 0x00020000)
```

```python
from layout import *


def build(stamp=False):
    b = Block()
    sX, sXN, sR = s(4, 4), s(8, 4), s(12, 4)
    ld_arg(b, s(16, 2), "x")
    ld_arg(b, s(18, 2), "ws")
    b.i("s_cmp_ge_u32", s(2), 256)
    b.i("s_cbranch_scc1", "K0_end")
    vrow, vj, vld, vst, t0, t1 = v(1), v(2), v(3), v(4), v(5), v(6)
    b.i("v_lshrrev_b32", vrow, 4, v(0))
    b.i("s_lshl_b32", s(3), s(2), 3)
    b.i("v_add_u32", vrow, s(3), vrow)
    b.i("v_and_b32", vj, 15, v(0))
    b.i("v_mul_u32_u24", vld, 1280, vrow)
    b.i("v_lshl_add_u32", vld, vj, 4, vld)
    b.wait(lgkm=0)
    srd(b, sX, s(16, 2), 2048 * 1280)
    PK = v(60, 20)
    for t in range(5):
        b.i("buffer_load_dwordx4", PK.sub(4 * t, 4), vld, sX, 0, mods=f"offen offset:{256 * t}")
    srd_off(b, sXN, s(18, 2), XN_OFF, XN_SIZE)
    srd_off(b, sR, s(18, 2), R2_OFF, 8192)
    b.i("v_lshrrev_b32", t0, 2, vj)
    b.i("v_lshlrev_b32", vst, 17, t0)
    b.i("v_lshrrev_b32", t0, 4, vrow)
    b.i("v_lshl_add_u32", vst, t0, 10, vst)
    b.i("v_and_b32", t0, 3, vj)
    b.i("v_lshl_add_u32", vst, t0, 8, vst)
    b.i("v_and_b32", t0, 15, vrow)
    b.i("v_lshl_add_u32", vst, t0, 4, vst)
    for t in range(1, 5):
        b.i("s_mov_b32", s(20 + t), t * 524288)
    X = v(16, 40)
    acc = v(8, 2)
    mean, tmp, mb, den = v(10), v(11), v(12), v(14)
    C640 = 1.0 / 640.0
    b.i("s_mov_b32", s(26), f2u(C640))
    b.i("s_mov_b32", s(27), f2u(1e-5))

    def unpack():
        for r in range(20):
            lo16(b, X[2 * r], PK[r])
            hi16(b, X[2 * r + 1], PK[r])

    def row_mean(dst):
        b.i("v_pk_add_f32", acc, X.sub(0, 2), X.sub(2, 2))
        for r in range(2, 20):
            b.i("v_pk_add_f32", acc, acc, X.sub(2 * r, 2))
        b.i("v_add_f32", dst, acc[0], acc[1])
        dpp_row_sum(b, dst)
        b.i("v_mul_f32", dst, s(26), dst)

    def row_var(dst, m):
        d = v(100, 2)
        mm = Reg("v", m.idx, 2)
        for r in range(20):
            b.i("v_pk_add_f32", d, X.sub(2 * r, 2), mm, mods="op_sel_hi:[1,0] neg_lo:[0,1] neg_hi:[0,1]")
            if r == 0:
                b.i("v_pk_mul_f32", acc, d, d)
            else:
                b.i("v_pk_fma_f32", acc, d, d, acc)
        b.i("v_add_f32", dst, acc[0], acc[1])
        dpp_row_sum(b, dst)
        b.i("v_mul_f32", dst, s(26), dst)

    def denom(dst):
        bf16_round(b, dst, tmp)
        b.i("v_add_f32", dst, s(27), dst)
        bf16_round(b, dst, tmp)
        b.i("v_sqrt_f32", dst, dst)
        b.nop(1)
        bf16_round(b, dst, tmp)

    b.wait(vm=0)
    unpack()
    row_mean(mean)
    row_var(den, mean)
    b.i("v_mov_b32", mb, mean)
    bf16_round(b, mb, tmp)
    denom(den)
    b.i("v_rcp_f32", den, den)
    mm = Reg("v", mb.idx, 2)
    dd = Reg("v", den.idx, 2)
    d = v(100, 2)
    for r in range(20):
        b.i("v_pk_add_f32", d, X.sub(2 * r, 2), mm, mods="op_sel_hi:[1,0] neg_lo:[0,1] neg_hi:[0,1]")
        b.i("v_cvt_pk_bf16_f32", tmp, d[0], d[1])
        lo16(b, d[0], tmp)
        hi16(b, d[1], tmp)
        b.i("v_pk_mul_f32", d, d, dd, mods="op_sel_hi:[1,0]")
        b.i("v_cvt_pk_bf16_f32", PK[r], d[0], d[1])
    for t in range(5):
        b.i("buffer_store_dwordx4", PK.sub(4 * t, 4), vst, sXN, s(20 + t) if t else 0, mods="offen sc1")
    unpack()
    row_mean(mean)
    row_var(den, mean)
    denom(den)
    b.i("v_rcp_f32", den, den)
    b.i("v_lshlrev_b32", t0, 2, vrow)
    b.i("v_cmp_eq_u32", "vcc", 0, vj)
    b.i("s_and_saveexec_b64", s(28, 2), "vcc")
    b.i("buffer_store_dword", den, t0, sR, 0, mods="offen sc1")
    b.wait(vm=0)
    b.label("K0_end")
    b.i("s_endpgm")
    check(b.ins, "K0")
    return b
```

```python
from layout import *
import attn16 as A
from attn16 import (MF, vKD0, vKD1, vVD0, vVD1, vKA, vVA, L, NM, S, P, Q, O, KF, VF, sKSRD, sVSRD, sTOFF, sMK, sMV,
                    dma_k, dma_v, k_read, v_read, mf_pv, sm_exp, sm_add, sm_cvt)

sWQ, sW1, sXN, sO, sH, sMISC = s(12, 4), s(16, 4), s(20, 4), s(24, 4), s(28, 4), s(32, 4)
sHEAD, sQB, sWAVE = s(39), s(40), s(41)
sWQo, sW1o, sXNo = s(44), s(45), s(46)
sMWQ, sMW1 = s(47), s(48)
sCNT = s(49)
sMKp, sMVp = s(50), s(51)
sSC = s(52, 2)
sT = [s(54), s(55), s(42), s(43)]
pX = s(64, 2)
pA, pB, pC, pD, pE, pF = s(66, 2), s(68, 2), s(70, 2), s(72, 2), s(74, 2), s(76, 2)
sC = [s(56 + i) for i in range(8)]
WRING = 114688
vWQD = [v(17), v(18)]
vW1D = v(19)
vXN = v(20)
vWQA = [v(21 + i) for i in range(4)]
vW1A = [v(25 + i) for i in range(4)]
vDUM = v(29)
QACC = lambda qt, ks, p: v(48 + (qt * 4 + ks) * 8 + 4 * p, 4)
HACC = lambda qt, ft: v(176 + (qt * 4 + ft) * 4, 4)
ABUF = [[a(128 + bf * 48 + f * 4, 4) for f in range(12)] for bf in range(2)]
BBUF = [[a(224 + qt * 4, 4) for qt in range(4)], [a(240 + qt * 4, 4) for qt in range(4)],
        [v(240 + qt * 4, 4) for qt in range(4)], [v(32 + qt * 4, 4) for qt in range(4)]]
THR = 2.0 ** 60


def a_read(stage, buf, n):
    f, x = n >> 1, n & 1
    if f < 8:
        ks, p = f >> 1, f & 1
        return I("ds_read_b64_tr_b16", ABUF[buf][f].sub(2 * x, 2), vWQA[ks],
                 mods=f"offset:{stage * 12288 + 1024 * x + 8 * p}")
    ft = f - 8
    return I("ds_read_b64_tr_b16", ABUF[buf][f].sub(2 * x, 2), vW1A[ft], mods=f"offset:{stage * 12288 + 512 * x}")


def wq_dma(n):
    return I("buffer_load_dwordx4", vWQD[n], sWQ, sWQo, mods=f"offen offset:{1024 * n} lds")


def w1_dma():
    return I("buffer_load_dwordx4", vW1D, sW1, sW1o, mods="offen lds")


def xn_load(buf, qt):
    return I("buffer_load_dwordx4", BBUF[buf][qt], vXN, sXN, sXNo, mods=f"offen offset:{1024 * qt}")


def pro_mfma(buf_a, buf_b, g):
    f, qt = g >> 2, g & 3
    acc = QACC(qt, f >> 1, f & 1) if f < 8 else HACC(qt, f - 8)
    return I(MF, acc, ABUF[buf_a][f], BBUF[buf_b][qt], acc)


def pro_step(u):
    sal = {g: [] for g in range(48)}
    mem = {g: [] for g in range(48)}
    sal[0].append(I("s_barrier"))
    for n in range(24):
        mem[1 + n].append(a_read((u + 1) % 4, (u + 1) & 1, n))
    if u == 0:
        sal[25].append(I("s_mov_b32", "m0", sMKp))
    elif u == 2:
        sal[25].append(I("s_mov_b32", "m0", sMVp))
    else:
        sal[25].append(I("s_mov_b32", "m0", sMKp if u == 1 else sMVp))
    mem[26].append(dma_k(u) if u < 2 else dma_v(u - 2))
    sal[28].append(I("s_add_u32", "m0", sMWQ, u * 12288))
    mem[29].append(wq_dma(0))
    mem[31].append(wq_dma(1))
    sal[33].append(I("s_add_u32", "m0", sMW1, u * 12288))
    mem[34].append(w1_dma())
    for qt in range(4):
        mem[36 + 2 * qt].append(xn_load((u + 3) % 4, qt))
    sal[43].append(I("s_add_u32", sWQo, sWQo, 262144))
    sal[44].append(I("s_add_u32", sW1o, sW1o, 110592))
    sal[45].append(I("s_add_u32", sXNo, sXNo, 131072))
    if u == 3:
        sal[38].append(I("s_add_u32", sMKp, sMKp, 8192))
        sal[39].append(I("s_add_u32", sMVp, sMVp, 8192))
        sal[40].append(I("s_add_u32", sTOFF, sTOFF, 8192))
        sal[41].append(I("s_sub_u32", sCNT, sCNT, 1))
        sal[46].append(I("s_cmp_lg_u32", sCNT, 0))
    sal[47].append(W(vm=16, lgkm=0))
    b = Block()
    for g in range(48):
        b.add(pro_mfma(u & 1, u, g))
        b.add(sal[g])
        b.add(mem[g])
    return b


def xlane_op(b, op, r, t):
    b.i("v_mov_b32", t, r)
    b.nop(2)
    b.i("v_permlane32_swap_b32", r, t)
    b.nop(1)
    b.i(op, r, r, t)
    b.i("v_mov_b32", t, r)
    b.nop(2)
    b.i("v_permlane16_swap_b32", r, t)
    b.nop(1)
    b.i(op, r, r, t)


def xlane_op4(b, op, rs, ts):
    for swap in ("v_permlane32_swap_b32", "v_permlane16_swap_b32"):
        for r, t in zip(rs, ts):
            b.i("v_mov_b32", t, r)
        for r, t in zip(rs, ts):
            b.i(swap, r, t)
        for r, t in zip(rs, ts):
            b.i(op, r, r, t)


def qk_raw(b):
    for qt in range(4):
        for kt in range(2):
            for ks in range(4):
                b.i(MF, S[qt][kt], KF[kt][ks], Q[qt][ks], 0 if ks == 0 else S[qt][kt])


def tile_max(b, dst):
    for qt in range(4):
        s0, s1 = S[qt][0], S[qt][1]
        b.i("v_max3_f32", dst[qt], s0[0], s0[1], s0[2])
        b.i("v_max3_f32", dst[qt], dst[qt], s0[3], s1[0])
        b.i("v_max3_f32", dst[qt], dst[qt], s1[1], s1[2])
        b.i("v_max_f32", dst[qt], dst[qt], s1[3])


def stamp(b, n, on):
    if on:
        b.i("s_memrealtime", s(80 + 2 * n, 2))


def setup(b, on):
    ld_arg(b, pA, "k")
    ld_arg(b, pB, "v")
    ld_arg(b, pC, "wq")
    ld_arg(b, pD, "w1")
    ld_arg(b, pX, "ws")
    ld_arg(b, pE, "b1")
    b.i("s_cmp_ge_u32", s(2), 256)
    b.i("s_cbranch_scc1", "K1_end")
    stamp(b, 0, on)
    b.i("s_and_b32", sT[0], s(2), 7)
    b.i("s_lshl_b32", sT[0], sT[0], 2)
    b.i("s_bfe_u32", sT[1], s(2), 0x20003)
    b.i("s_add_u32", sHEAD, sT[0], sT[1])
    b.i("s_lshr_b32", sQB, s(2), 5)
    vl, vw, t0, t1, t2, t3 = v(200), v(201), v(202), v(203), v(204), v(205)
    b.i("v_and_b32", vl, 63, v(0))
    b.i("v_lshrrev_b32", vw, 6, v(0))
    b.i("s_nop", 0)
    b.i("v_readfirstlane_b32", sWAVE, vw)
    b.i("v_lshrrev_b32", t0, 4, vl)
    b.i("v_and_b32", t1, 15, vl)
    b.i("v_lshlrev_b32", t2, 2, t0)
    b.i("v_xor_b32", t2, t1, t2)
    b.i("v_lshlrev_b32", t2, 4, t2)
    b.i("v_lshl_add_u32", t3, vw, 3, t0)
    b.i("v_lshl_add_u32", t2, t3, 13, t2)
    b.i("s_lshl_b32", sT[0], sHEAD, 8)
    b.i("v_add_u32", vWQD[0], sT[0], t2)
    b.i("v_add_u32", vWQD[1], 4 * 8192 - 1024, vWQD[0])
    b.i("v_lshrrev_b32", t2, 3, vl)
    b.i("v_lshl_add_u32", t2, vw, 3, t2)
    b.i("v_mul_u32_u24", vW1D, 3456, t2)
    b.i("v_and_b32", t2, 1, t0)
    b.i("v_and_b32", t3, 1, vw)
    b.i("v_lshl_add_u32", t2, t3, 1, t2)
    b.i("v_lshlrev_b32", t2, 1, t2)
    b.i("v_and_b32", t3, 7, vl)
    b.i("v_xor_b32", t2, t2, t3)
    b.i("v_lshl_add_u32", vW1D, t2, 4, vW1D)
    b.i("s_lshl_b32", sT[0], sHEAD, 7)
    b.i("v_add_u32", vW1D, sT[0], vW1D)
    b.i("s_lshl_b32", sT[0], sQB, 4)
    b.i("s_lshl_b32", sT[1], sWAVE, 2)
    b.i("s_add_u32", sT[2], sT[0], sT[1])
    b.i("s_lshl_b32", sT[0], sT[2], 10)
    b.i("v_lshlrev_b32", vXN, 4, vl)
    b.i("v_add_u32", vXN, sT[0], vXN)
    b.wait(lgkm=0)
    srd(b, sWQ, pC, 640 * 8192)
    srd(b, sW1, pD, 640 * 3456)
    b.i("s_cmp_lt_u32", sHEAD, 27)
    b.i("s_cselect_b32", sW1[2], 640 * 3456, 0)
    srd_off(b, sXN, pX, XN_OFF, XN_SIZE)
    b.i("s_lshl_b32", sT[0], sWAVE, 11)
    b.i("s_add_u32", sMWQ, sT[0], WRING)
    b.i("s_mov_b32", sMK, sT[0])
    b.i("s_add_u32", sMV, sT[0], 65536)
    b.i("s_lshl_b32", sT[0], sWAVE, 10)
    b.i("s_add_u32", sMW1, sT[0], WRING + 8192)
    b.i("s_mov_b32", sWQo, 0)
    b.i("s_mov_b32", sW1o, 0)
    b.i("s_mov_b32", sXNo, 0)
    for st in range(4):
        if st == 3:
            b.i("buffer_load_dword", vDUM, vXN, sXN, 0, mods="offen")
        b.i("s_add_u32", "m0", sMWQ, st * 12288)
        b.i("s_nop", 0)
        b.add(wq_dma(0))
        b.add(wq_dma(1))
        b.i("s_add_u32", "m0", sMW1, st * 12288)
        b.i("s_add_u32", sWQo, sWQo, 262144)
        b.add(w1_dma())
        b.i("s_add_u32", sW1o, sW1o, 110592)
        if st >= 1:
            for qt in range(4):
                b.add(xn_load(st - 1, qt))
            b.i("s_add_u32", sXNo, sXNo, 131072)
    b.i("s_lshl_b32", sT[0], sHEAD, 19)
    srd_off(b, sKSRD, pA, sT[0], 524288)
    srd_off(b, sVSRD, pB, sT[0], 524288)
    A.addr_setup(b, vl, vw, [t0, t1, t2, t3])
    b.i("v_lshrrev_b32", t0, 4, vl)
    b.i("v_bfe_u32", t1, vl, 2, 2)
    b.i("v_and_b32", t2, 3, vl)
    b.i("v_lshl_add_u32", t3, t0, 3, t1)
    b.i("v_lshlrev_b32", vWQA[0], 8, t3)
    b.i("v_lshl_add_u32", vWQA[0], t1, 6, vWQA[0])
    b.i("v_lshl_add_u32", vWQA[0], t2, 4, vWQA[0])
    b.i("v_add_u32", vWQA[0], WRING, vWQA[0])
    for ks in range(1, 4):
        b.i("v_xor_b32", vWQA[ks], 64 * ks, vWQA[0])
    b.i("v_lshlrev_b32", vW1A[0], 7, t3)
    b.i("v_lshl_add_u32", vW1A[0], t2, 3, vW1A[0])
    b.i("v_lshrrev_b32", t1, 1, t1)
    b.i("v_and_b32", t0, 1, t0)
    b.i("v_lshl_add_u32", t1, t0, 1, t1)
    b.i("v_lshl_add_u32", vW1A[0], t1, 5, vW1A[0])
    b.i("v_add_u32", vW1A[0], WRING + 8192, vW1A[0])
    for ft in range(1, 4):
        b.i("v_xor_b32", vW1A[ft], 32 * ft, vW1A[0])
    b.i("s_mov_b32", sMKp, sMK)
    b.i("s_mov_b32", sMVp, sMV)
    b.i("s_mov_b32", sTOFF, 0)
    b.i("s_mov_b32", sCNT, 5)
    b.i("s_mov_b32", sSC[0], f2u(128 ** -0.5 * 1.4426950408889634))
    b.i("s_mov_b32", sSC[1], f2u(128 ** -0.5 * 1.4426950408889634))
    for r in range(48, 240):
        b.i("v_mov_b32", v(r), 0)
    for r in range(128):
        b.i("v_accvgpr_write_b32", a(r), 0)
    stamp(b, 1, on)
    b.wait(vm=22)
    b.i("s_barrier")
    for n in range(24):
        b.add(a_read(0, 0, n))
    b.wait(vm=15, lgkm=0)


def q_epilogue(b):
    for j in (5, 6):
        b.i("s_add_u32", "m0", sMK, j * 8192)
        b.i("s_nop", 0)
        b.add(dma_k(0))
        b.add(dma_k(1))
        b.i("s_add_u32", "m0", sMV, j * 8192)
        b.i("s_nop", 0)
        b.add(dma_v(0))
        b.add(dma_v(1))
        b.i("s_add_u32", sTOFF, sTOFF, 8192)
    for n in range(8):
        b.add(k_read(0, n))
    for j in range(63, -1, -1):
        src = v(48 + 2 * j, 2)
        b.i("v_pk_mul_f32", src, src, sSC)
        if j < 63:
            pj = v(48 + 2 * (j + 1), 2)
            b.i("v_cvt_pk_bf16_f32", v(112 + j + 1), pj[0], pj[1])
    b.i("v_cvt_pk_bf16_f32", v(112), v(48), v(49))
    b.wait(lgkm=0)
    b.nop(2)
    qk_raw(b)
    M = [v(21 + i) for i in range(4)]
    T = [v(88 + i) for i in range(4)]
    b.nop(8)
    tile_max(b, M)
    xlane_op4(b, "v_max_f32", M, T)
    for qt in range(4):
        for r in range(4):
            b.i("v_mul_f32", NM[qt][r], -1.0, M[qt])
        b.i("v_mov_b32", L[qt], 0)
    b.nop(2)


def tail(b):
    b.add(sm_add(1, 11))
    b.add(sm_cvt(1, 5))
    for e in range(12, 16):
        b.add(sm_exp(1, e))
    for e in range(12, 16):
        b.add(sm_add(1, e))
    b.add(sm_cvt(1, 6))
    b.add(sm_cvt(1, 7))
    b.nop(2)
    for dt in range(8):
        for qt in (2, 3):
            b.add(mf_pv(qt, dt))


RINV2 = [v(92 + i) for i in range(4)]
B1P = v(96, 8)
B1F = v(40, 16)


def tail_loads(b):
    vl, t0, t1 = v(88), v(89), v(90)
    b.i("v_and_b32", vl, 63, v(0))
    srd_off(b, sMISC, pX, R2_OFF, 8192)
    b.i("s_lshl_b32", sT[0], sT[2], 6)
    b.i("v_and_b32", t0, 15, vl)
    b.i("v_lshl_add_u32", t0, t0, 2, sT[0])
    for qt in range(4):
        b.i("buffer_load_dword", RINV2[qt], t0, sMISC, 0, mods=f"offen offset:{64 * qt}")
    srd(b, sW1, pE, 1728 * 2)
    b.i("s_lshl_b32", sT[0], sHEAD, 7)
    b.i("v_lshrrev_b32", t1, 4, vl)
    b.i("v_lshl_add_u32", t1, t1, 3, sT[0])
    for ft in range(4):
        b.i("buffer_load_dwordx2", B1P.sub(2 * ft, 2), t1, sW1, 0, mods=f"offen offset:{32 * ft}")


def o_epilogue(b):
    T = [v(88 + i) for i in range(4)]
    RI = [v(24 + 2 * i) for i in range(4)]
    srd_off(b, sO, pX, O_OFF, O_SIZE)
    b.i("s_lshl_b32", sT[0], sHEAD, 19)
    b.i("s_lshl_b32", sT[1], sT[2], 10)
    b.i("s_add_u32", sT[0], sT[0], sT[1])
    vst = v(21)
    b.i("v_and_b32", vst, 63, v(0))
    b.i("v_lshlrev_b32", vst, 4, vst)
    b.i("v_add_u32", vst, sT[0], vst)
    for c in range(1, 4):
        b.i("s_mov_b32", sC[c], c * 131072)
    for qt in range(4):
        b.i("v_rcp_f32", RI[qt], L[qt])
    n = 0
    for c in range(4):
        for qt in range(4):
            w = v(40 + 8 * (n & 3), 8)
            pk = v(72 + 4 * (n & 3), 4)
            n += 1
            for t in range(2):
                for r in range(4):
                    b.i("v_accvgpr_read_b32", w[4 * t + r], O[2 * c + t][qt][r])
            rr = Reg("v", RI[qt].idx, 2)
            for h in range(4):
                b.i("v_pk_mul_f32", w.sub(2 * h, 2), w.sub(2 * h, 2), rr, mods="op_sel_hi:[1,0]")
            for h in range(4):
                b.i("v_cvt_pk_bf16_f32", pk[h], w[2 * h], w[2 * h + 1])
            b.i("buffer_store_dwordx4", pk, vst, sO, sC[c] if c else 0, mods=f"offen offset:{1024 * qt} sc1")


def h_epilogue(b):
    srd_off(b, sH, pX, H_OFF, H_SIZE)
    b.i("s_cmp_lt_u32", sHEAD, 27)
    b.i("s_cselect_b32", sH[2], H_SIZE, 0)
    b.i("s_lshl_b32", sT[0], sHEAD, 18)
    b.i("s_lshl_b32", sT[1], sT[2], 10)
    b.i("s_add_u32", sT[0], sT[0], sT[1])
    vst = v(22)
    b.i("v_and_b32", vst, 63, v(0))
    b.i("v_lshlrev_b32", vst, 4, vst)
    b.i("v_add_u32", vst, sT[0], vst)
    c1 = -2.0 * 1.4426950408889634 * 0.7978845608028654
    b.i("s_mov_b32", sC[4], f2u(c1))
    b.i("s_mov_b32", sC[5], f2u(c1))
    b.i("s_mov_b32", sC[6], f2u(c1 * 0.044715))
    b.i("s_mov_b32", sC[7], f2u(c1 * 0.044715))
    pc1, pc3 = Reg("s", sC[4].idx, 2), Reg("s", sC[6].idx, 2)
    b.wait(vm=16)
    for ft in range(4):
        lo16(b, B1F[4 * ft], B1P[2 * ft])
        hi16(b, B1F[4 * ft + 1], B1P[2 * ft])
        lo16(b, B1F[4 * ft + 2], B1P[2 * ft + 1])
        hi16(b, B1F[4 * ft + 3], B1P[2 * ft + 1])
    RV = [v(24 + 2 * i, 2) for i in range(4)]
    for qt in range(4):
        b.i("v_mov_b32", RV[qt][0], RINV2[qt])
    C1 = v(104, 2)
    b.i("v_mov_b32", C1[0], sC[4])
    b.i("v_mov_b32", C1[1], sC[4])
    n = 0
    for c in range(2):
        for qt in range(4):
            U = v(56, 8)
            Wt = v(64, 8)
            pk = v(72 + 4 * (n & 3), 4)
            n += 1
            for h in range(4):
                ft, r = 2 * c + (h >> 1), 2 * (h & 1)
                b.i("v_pk_fma_f32", U.sub(2 * h, 2), HACC(qt, ft).sub(r, 2), RV[qt], B1F.sub(4 * ft + r, 2),
                    mods="op_sel_hi:[1,0,1]")
            for h in range(4):
                b.i("v_pk_mul_f32", Wt.sub(2 * h, 2), U.sub(2 * h, 2), U.sub(2 * h, 2))
            for h in range(4):
                b.i("v_pk_fma_f32", Wt.sub(2 * h, 2), Wt.sub(2 * h, 2), pc3, C1)
            for h in range(4):
                b.i("v_pk_mul_f32", Wt.sub(2 * h, 2), Wt.sub(2 * h, 2), U.sub(2 * h, 2))
            for e in range(8):
                b.i("v_exp_f32", Wt[e], Wt[e])
            for h in range(4):
                b.i("v_pk_add_f32", Wt.sub(2 * h, 2), Wt.sub(2 * h, 2), 1.0)
            for e in range(8):
                b.i("v_rcp_f32", Wt[e], Wt[e])
            for h in range(4):
                b.i("v_pk_mul_f32", U.sub(2 * h, 2), U.sub(2 * h, 2), Wt.sub(2 * h, 2))
            for h in range(4):
                b.i("v_cvt_pk_bf16_f32", pk[h], U[2 * h], U[2 * h + 1])
            b.i("buffer_store_dwordx4", pk, vst, sH, sC[1] if c else 0, mods=f"offen offset:{1024 * qt} sc1")


def fallback(b):
    M = [v(21), v(22), v(23), v(88)]
    TM = [v(89 + i) for i in range(3)] + [v(104)]
    T = [v(105 + i) for i in range(4)]
    AL = [v(24 + i) for i in range(4)]
    b.label("K1_fb")
    for qt in range(4):
        b.i("v_mov_b32", M[qt], 0xFF800000)
        b.i("v_mov_b32", L[qt], 0)
    for r in range(128):
        b.i("v_accvgpr_write_b32", a(r), 0)
    b.i("s_mov_b32", sTOFF, 0)
    b.wait(vm=0, lgkm=0)
    b.label("K1_fb_loop")
    body = Block()
    body.i("s_barrier")
    body.i("s_mov_b32", "m0", sMK)
    body.i("s_nop", 0)
    body.add(dma_k(0))
    body.add(dma_k(1))
    body.i("s_mov_b32", "m0", sMV)
    body.i("s_nop", 0)
    body.add(dma_v(0))
    body.add(dma_v(1))
    body.wait(vm=0)
    body.i("s_barrier")
    for n in range(8):
        body.add(k_read(0, n))
    body.wait(lgkm=0)
    for r in range(16):
        body.add(v_read(0, r))
    qk_raw(body)
    body.nop(8)
    tile_max(body, TM)
    xlane_op4(body, "v_max_f32", TM, T)
    for qt in range(4):
        body.i("v_max_f32", TM[qt], TM[qt], M[qt])
    for qt in range(4):
        body.i("v_sub_f32", AL[qt], M[qt], TM[qt])
    for qt in range(4):
        body.i("v_exp_f32", AL[qt], AL[qt])
        body.i("v_mov_b32", M[qt], TM[qt])
    for qt in range(4):
        body.i("v_mul_f32", L[qt], L[qt], AL[qt])
    for h in range(2):
        for e in range(16):
            r = A.sreg(h, e)
            body.i("v_sub_f32", r, r, M[2 * h + (e >> 3)])
        for e in range(16):
            body.add(sm_exp(h, e))
        body.nop(1)
        for e in range(16):
            body.add(sm_add(h, e))
        for k in range(8):
            body.add(sm_cvt(h, k))
    for dt in range(8):
        for qt in range(4):
            for r in range(4):
                body.i("v_accvgpr_read_b32", T[r], O[dt][qt][r])
            for r in range(4):
                body.i("v_mul_f32", T[r], T[r], AL[qt])
            for r in range(4):
                body.i("v_accvgpr_write_b32", O[dt][qt][r], T[r])
    body.wait(lgkm=0)
    body.nop(2)
    for dt in range(8):
        for qt in range(4):
            body.add(mf_pv(qt, dt))
    body.i("s_add_u32", sTOFF, sTOFF, 8192)
    body.i("s_cmp_lt_u32", sTOFF, 524288)
    body.nop(8)
    check(body.ins + body.ins, "K1 fallback")
    b.add(body)
    b.i("s_cbranch_scc1", "K1_fb_loop")
    T4 = [v(88 + i) for i in range(4)]
    xlane_op4(b, "v_add_f32", L, T4)
    b.i("s_branch", "K1_norm")


def stamps_out(b, n):
    b.wait(vm=0, lgkm=0)
    srd_off(b, sMISC, pX, 0x4000000, 1 << 20)
    b.i("s_lshl_b32", sT[0], s(2), 2)
    b.i("s_add_u32", sT[0], sT[0], sWAVE)
    b.i("s_lshl_b32", sT[0], sT[0], 6)
    b.i("v_mov_b32", v(1), sT[0])
    for k in range(n):
        b.i("v_mov_b32", v(2), s(80 + 2 * k))
        b.i("buffer_store_dword", v(2), v(1), sMISC, 0, mods=f"offen offset:{4 * k}")
        b.nop(1)


def build(on=False, thr=THR):
    b = Block()
    tr = []
    pre = Block()
    setup(pre, on)
    b.add(pre)
    tr += pre.ins
    stamp(b, 2, on)
    b.label("K1_pro")
    steps = Block()
    for u in range(4):
        steps.add(pro_step(u))
    b.add(steps)
    b.i("s_cbranch_scc1", "K1_pro")
    tr += steps.ins * 5
    stamp(b, 3, on)
    qe = Block()
    q_epilogue(qe)
    b.add(qe)
    tr += qe.ins
    stamp(b, 4, on)
    it0 = A.iteration(0, g2=False, sm1_prev=False)
    b.add(it0)
    tr += it0.ins
    b.i("s_mov_b32", sCNT, 8)
    b.i("s_branch", "K1_u1")
    b.raw(".p2align 6")
    b.label("K1_loop")
    its = [A.iteration(u) for u in range(8)]
    b.add(its[0])
    b.label("K1_u1")
    for u in range(1, 8):
        b.add(its[u])
        tr += its[u].ins
    for u in range(8):
        tr += its[u].ins
    b.i("s_sub_u32", sCNT, sCNT, 1)
    b.i("s_cmp_lg_u32", sCNT, 0)
    b.i("s_cbranch_scc1", "K1_loop")
    stamp(b, 5, on)
    e = Block()
    tail_loads(e)
    tail(e)
    T4 = [v(88 + i) for i in range(4)]
    xlane_op4(e, "v_add_f32", L, T4)
    e.i("s_mov_b32", sT[0], f2u(thr))
    e.i("v_cmp_nle_f32", "vcc", L[0], sT[0]) if False else None
    e.i("v_max3_f32", T4[0], L[0], L[1], L[2])
    e.i("v_cmp_nle_f32", s(66, 2), L[0], sT[0])
    e.i("v_cmp_nle_f32", s(68, 2), L[1], sT[0])
    e.i("v_cmp_nle_f32", s(70, 2), L[2], sT[0])
    e.i("v_cmp_nle_f32", s(72, 2), L[3], sT[0])
    e.nop(2)
    e.i("s_or_b64", s(66, 2), s(66, 2), s(68, 2))
    e.i("s_or_b64", s(70, 2), s(70, 2), s(72, 2))
    e.i("s_or_b64", s(66, 2), s(66, 2), s(70, 2))
    e.i("s_cmp_lg_u64", s(66, 2), 0)
    e.i("s_cselect_b32", sT[0], 1, 0)
    e.i("s_lshl_b32", sT[1], sWAVE, 2)
    e.i("v_mov_b32", T4[0], sT[0])
    e.i("v_mov_b32", T4[1], sT[1])
    e.i("v_add_u32", T4[1], 140 * 1024, T4[1])
    e.i("ds_write_b32", T4[1], T4[0])
    e.i("v_mov_b32", T4[1], 140 * 1024)
    e.wait(lgkm=0)
    e.i("s_barrier")
    e.i("ds_read_b128", v(104, 4), T4[1])
    e.wait(lgkm=0)
    e.i("v_or3_b32", T4[0], v(104), v(105), v(106))
    e.i("v_or_b32", T4[0], T4[0], v(107))
    e.nop(1)
    e.i("v_readfirstlane_b32", sT[0], T4[0])
    e.i("s_cmp_lg_u32", sT[0], 0)
    e.i("s_cbranch_scc1", "K1_fb")
    e.label("K1_norm")
    e.nop(8)
    o_epilogue(e)
    stamp(e, 6, on)
    h_epilogue(e)
    stamp(e, 7, on)
    b.add(e)
    tr += e.ins
    if on:
        stamps_out(b, 8)
    b.wait(vm=0)
    b.label("K1_end")
    b.i("s_endpgm")
    fallback(b)
    check(tr, "K1")
    return b


if __name__ == "__main__":
    b = build()
    print(len(b.ins))
```

```python
from layout import *

MF = "v_mfma_f32_16x16x32_bf16"
R = 6
STG = 20480
sW, sB, sP, sX, sOUT, sMISC = s(4, 4), s(8, 4), s(12, 4), s(16, 4), s(20, 4), s(24, 4)
sWo, sBo = s(28), s(29)
sM0 = s(30)
sZ = s(31)
sROLE, sWAVE, sTILE, sNT, sRT0 = s(32), s(33), s(34), s(35), s(36)
sT = [s(38 + i) for i in range(6)]
pWS, pWO, pW2, pX, pOUT, pB2, pDBG = (s(44 + 2 * i, 2) for i in range(7))
pH = s(58, 2)
sW2o, sHo = s(60), s(61)
sPO = s(62)
vWD = [v(1 + j) for j in range(5)]
vB = [v(6), v(7)]
vA = [[v(8), v(9)], [v(10), v(11)]]
vP = v(12)
ACC = lambda nt, qt: v(16 + (qt * 10 + nt) * 4, 4)
NA = 8
AF = [a(4 * i, 4) for i in range(NA)]
BF = [[[a(32 + (bf * 4 + ks * 2 + qt) * 4, 4) for qt in range(2)] for ks in range(2)] for bf in range(R)]
LOOK = 6


def a_read(stage, n, x):
    ks, nt = divmod(n, 10)
    grp, st = divmod(stage, 3)
    return ks, nt, vA[grp][nt & 1], st * STG + ks * 10240 + x * 5120 + 32 * nt


def rd(stage, n, slot, x):
    ks, nt, base, off = a_read(stage, n, x)
    return I("ds_read_b64_tr_b16", AF[slot].sub(2 * x, 2), base, mods=f"offset:{off}")


def w_dma(j):
    return I("buffer_load_dwordx4", vWD[j], sW, sWo, mods=f"offen offset:{1024 * (j & 3)} lds")


def b_load(buf, ks, qt):
    return I("buffer_load_dwordx4", BF[buf][ks][qt], vB[ks], sB, sBo, mods=f"offen offset:{1024 * qt} sc1")


def prefetch_ops(u):
    st = (u + 4) % R
    ops = []
    ops.append((I("s_add_u32", "m0", sM0, st * STG), w_dma(0)))
    ops += [(None, w_dma(1)), (None, w_dma(2)), (None, w_dma(3))]
    ops.append((I("s_add_u32", "m0", sM0, st * STG + 4096), w_dma(4)))
    for ks in range(2):
        for qt in range(2):
            ops.append((None, b_load(st, ks, qt)))
    return ops


def slot(u, n):
    return (20 * u + n) % NA


def step(u):
    sal = {g: [] for g in range(40)}
    mem = {g: [] for g in range(40)}
    for n in range(20):
        m = n + LOOK
        st, mm = (u, m) if m < 20 else ((u + 1) % R, m - 20)
        for x in range(2):
            mem[2 * n + x].append(rd(st, mm, slot(u, m), x))
    for n in range(1, 21):
        sal[2 * n - 1].append(W(lgkm=2 * LOOK - 3))
    ops = prefetch_ops(u)
    gaps = [1, 4, 7, 10, 13, 16, 19, 22, 25]
    pre = Block()
    if u == 0:
        sal[0] += [I("s_cmp_eq_u32", sZ, 12),
                   I("s_cselect_b32", sW[0], pW2[0], sW[0]), I("s_cselect_b32", sW[1], pW2[1], sW[1]),
                   I("s_cselect_b32", sW[2], 1728 * 1280, sW[2]), I("s_cselect_b32", sWo, sW2o, sWo),
                   I("s_cselect_b32", sB[0], pH[0], sB[0]), I("s_cselect_b32", sB[1], pH[1], sB[1]),
                   I("s_cselect_b32", sB[2], H_SIZE, sB[2]), I("s_cselect_b32", sBo, sHo, sBo)]
    if u == 1:
        sal[0] += [I("s_cmp_eq_u32", sZ, 19),
                   I("s_cselect_b32", sW[2], 0, sW[2]), I("s_cselect_b32", sB[2], 0, sB[2])]
    for (sc, me), g in zip(ops, gaps):
        if sc is not None:
            sal[g - 1].append(sc)
        mem[g].insert(0, me)
    sal[26].append(I("s_add_u32", sWo, sWo, 81920))
    sal[28].append(I("s_add_u32", sBo, sBo, 262144))
    g = 2 * 14 - 1
    bar = [I("s_waitcnt", "vmcnt(27)"), I("s_barrier")]
    if u in (4, 5, 0):
        z = {4: 16, 5: 17, 0: 18}[u]
        lab = f"K2_w{u}"
        w27 = W(vm=27)
        w27.note = f"skip{z}"
        bar = [I("s_cmp_eq_u32", sZ, z), I("s_cbranch_scc1", lab), w27, Label(lab), W(vm=37), I("s_barrier")]
    else:
        bar = [W(vm=27), I("s_barrier")]
    sal[g] += bar
    sal[32].append(I("s_add_u32", sZ, sZ, 1))
    b = Block()
    for g in range(40):
        n, qt = g >> 1, g & 1
        ks, nt = divmod(n, 10)
        if g == 39:
            pass
        b.add(I(MF, ACC(nt, qt), AF[slot(u, n)], BF[u][ks][qt], ACC(nt, qt)))
        b.add(sal[g])
        b.add(mem[g])
    return b


def store_partial(b, voff, off_s):
    n = 0
    for qt in range(2):
        for c in range(5):
            pk = v(96 + 4 * (n & 3), 4)
            n += 1
            t0, t1 = ACC(2 * c, qt), ACC(2 * c + 1, qt)
            b.i("v_cvt_pk_bf16_f32", pk[0], t0[0], t0[1])
            b.i("v_cvt_pk_bf16_f32", pk[1], t0[2], t0[3])
            b.i("v_cvt_pk_bf16_f32", pk[2], t1[0], t1[1])
            b.i("v_cvt_pk_bf16_f32", pk[3], t1[2], t1[3])
            b.nop(1)
            b.i("v_permlane32_swap_b32", pk[0], pk[2])
            b.i("v_permlane32_swap_b32", pk[1], pk[3])
            b.nop(1)
            b.i("v_permlane16_swap_b32", pk[0], pk[2])
            b.i("v_permlane16_swap_b32", pk[1], pk[3])
            ch = qt * 5 + c
            b.i("s_add_u32", sT[0], off_s, ch * 4096)
            b.i("buffer_store_dwordx4", pk, voff, sP, sT[0], mods="offen sc1")


def stamp(b, n, on):
    if on:
        b.i("s_memrealtime", s(80 + 2 * n, 2))


def build(on=False):
    b = Block()
    tr = []
    p = Block()
    ld_arg(p, pWS, "ws")
    ld_arg(p, pWO, "wo")
    ld_arg(p, pW2, "w2")
    ld_arg(p, pX, "x")
    ld_arg(p, pOUT, "out")
    ld_arg(p, pB2, "b2")
    ld_arg(p, pDBG, "dbg")
    p.i("s_cmp_ge_u32", s(2), 256)
    p.i("s_cbranch_scc1", "K2_end")
    stamp(p, 0, on)
    p.i("s_and_b32", sROLE, s(2), 3)
    p.i("s_bfe_u32", sT[0], s(2), 0x10002)
    p.i("s_lshr_b32", sT[1], s(2), 5)
    p.i("s_bfe_u32", sNT, s(2), 0x20003)
    p.i("s_lshl_b32", sT[0], sT[0], 3)
    p.i("s_add_u32", sT[0], sT[0], sT[1])
    p.i("s_lshl_b32", sRT0, sT[0], 3)
    p.i("s_lshl_b32", sTILE, sT[0], 2)
    p.i("s_add_u32", sTILE, sTILE, sNT)
    vl, vw, t0, t1, t2, t3 = v(100), v(101), v(102), v(103), v(104), v(105)
    p.i("v_and_b32", vl, 63, v(0))
    p.i("v_lshrrev_b32", vw, 6, v(0))
    p.i("s_nop", 0)
    p.i("v_readfirstlane_b32", sWAVE, vw)
    p.i("s_mul_i32", sT[2], sNT, 320)
    p.i("v_mul_u32_u24", t0, 320, vw)
    p.i("v_add_u32", t0, t0, vl)
    for j in range(5):
        p.i("v_add_u32", t1, 64 * j, t0)
        p.i("v_mul_u32_u24", t2, 52429, t1)
        p.i("v_lshrrev_b32", t2, 20, t2)
        p.i("v_mul_u32_u24", t3, 20, t2)
        p.i("v_sub_u32", t1, t1, t3)
        p.i("v_bfe_u32", t3, t2, 2, 1)
        p.i("v_lshlrev_b32", t3, 1, t3)
        p.i("v_xor_b32", t1, t1, t3)
        p.i("v_mul_u32_u24", t2, 1280, t2)
        p.i("v_lshl_add_u32", t2, t1, 4, t2)
        p.i("v_add_u32", t2, sT[2], t2)
        if j & 3:
            p.i("v_subrev_u32", vWD[j], 1024 * (j & 3), t2)
        else:
            p.i("v_mov_b32", vWD[j], t2)
    p.i("s_lshl_b32", sT[0], sWAVE, 1)
    p.i("s_add_u32", sT[0], sT[0], sRT0)
    p.i("s_lshl_b32", sT[0], sT[0], 10)
    p.i("v_lshlrev_b32", vB[0], 4, vl)
    p.i("v_add_u32", vB[0], sT[0], vB[0])
    p.i("v_add_u32", vB[1], 131072, vB[0])
    p.wait(lgkm=0)
    srd(p, sW, pWO, 4096 * 1280)
    srd_off(p, sB, pWS, O_OFF, O_SIZE)
    p.i("s_add_u32", pH[0], pWS[0], H_OFF)
    p.i("s_addc_u32", pH[1], pWS[1], 0)
    p.i("s_mul_i32", sWo, sROLE, 1024 * 1280)
    p.i("s_mul_i32", sBo, sROLE, 32 * 131072)
    p.i("s_mul_i32", sW2o, sROLE, 7 * 81920)
    p.i("s_mul_i32", sHo, sROLE, 14 * 131072)
    p.i("s_mul_i32", sM0, sWAVE, 5120)
    for st in range(4):
        for sc, me in prefetch_ops((st - 4) % R):
            if sc is not None:
                p.add(sc)
                p.i("s_nop", 0)
            p.add(me)
        p.i("s_add_u32", sWo, sWo, 81920)
        p.i("s_add_u32", sBo, sBo, 262144)
    p.i("v_lshrrev_b32", t0, 4, vl)
    p.i("v_bfe_u32", t1, vl, 2, 2)
    p.i("v_lshl_add_u32", t1, t0, 2, t1)
    p.i("v_mul_u32_u24", t1, 320, t1)
    p.i("v_and_b32", t2, 3, vl)
    p.i("v_lshl_add_u32", t1, t2, 3, t1)
    p.i("v_and_b32", t0, 1, t0)
    p.i("v_lshlrev_b32", t0, 5, t0)
    p.i("v_add_u32", vA[0][0], t1, t0)
    p.i("v_sub_u32", vA[0][1], t1, t0)
    p.i("v_add_u32", vA[1][0], 3 * STG, vA[0][0])
    p.i("v_add_u32", vA[1][1], 3 * STG, vA[0][1])
    srd_off(p, sP, pWS, PS_OFF, 2 * 0xC00000)
    p.i("s_lshl_b32", sT[0], sTILE, 2)
    p.i("s_add_u32", sT[0], sT[0], sWAVE)
    p.i("s_mul_i32", sT[0], sT[0], 40)
    p.i("s_add_u32", sT[0], sT[0], sROLE)
    p.i("s_lshl_b32", sPO, sT[0], 10)
    p.i("v_lshlrev_b32", vP, 4, vl)
    for r in range(16, 96):
        p.i("v_mov_b32", v(r), 0)
    p.i("s_mov_b32", sZ, 0)
    stamp(p, 1, on)
    p.wait(vm=27)
    p.i("s_barrier")
    for n in range(LOOK):
        for x in range(2):
            p.add(rd(0, n, slot(0, n), x))
    p.wait(lgkm=2 * (LOOK - 1))
    b.add(p)
    tr += p.ins
    stamp(b, 2, on)
    steps = [step(u) for u in range(R)]
    bound = Block()
    bound.nop(8)
    store_partial(bound, vP, sPO)
    for r in range(16, 96):
        bound.i("v_mov_b32", v(r), 0)
    bound.nop(2)
    b.label("K2_loop")
    for u in range(R):
        b.label(f"K2_u{u}")
        b.add(steps[u])
        if u == 3:
            b.i("s_cmp_eq_u32", sZ, 16)
            b.i("s_cbranch_scc1", "K2_bound")
        if u == 4:
            b.i("s_cmp_eq_u32", sZ, 23)
            b.i("s_cbranch_scc1", "K2_fin")
    b.i("s_branch", "K2_loop")
    b.label("K2_bound")
    b.add(bound)
    b.i("s_branch", "K2_u4")
    for z in range(23):
        tr += [x for x in steps[z % R].ins if getattr(x, "note", "") != f"skip{z}"]
        if z == 15:
            tr += bound.ins
    b.label("K2_fin")
    e = Block()
    stamp(e, 3, on)
    e.nop(8)
    e.i("s_add_u32", sPO, sPO, PM_OFF - PS_OFF)
    store_partial(e, vP, sPO)
    vl, t0, t1, t2 = v(112), v(113), v(114), v(115)
    e.i("v_and_b32", vl, 63, v(0))
    srd(e, sX, pX, 2048 * 1280)
    srd(e, sOUT, pOUT, 2048 * 1280)
    srd(e, sMISC, pB2, 1280)
    e.i("s_lshl_b32", sT[0], sRT0, 4)
    e.i("s_lshl_b32", sT[1], sROLE, 5)
    e.i("s_add_u32", sT[0], sT[0], sT[1])
    e.i("v_and_b32", t0, 15, vl)
    e.i("v_add_u32", t0, sT[0], t0)
    e.i("v_mul_u32_u24", t0, 1280, t0)
    e.i("v_lshrrev_b32", t1, 4, vl)
    e.i("v_lshlrev_b32", t1, 4, t1)
    e.i("s_mul_i32", sT[1], sNT, 320)
    e.i("v_add_u32", t1, sT[1], t1)
    XO, CO, PO = [v(4 + j) for j in range(3)], [v(8 + j) for j in range(3)], [v(12 + j) for j in range(3)]
    e.i("s_lshl_b32", sT[2], sTILE, 2)
    e.i("s_add_u32", sT[2], sT[2], sROLE)
    e.i("s_mul_i32", sT[2], sT[2], 40 * 1024)
    for j in range(3):
        e.i("s_add_u32", sT[0], sWAVE, 4 * j)
        e.i("s_cmp_ge_u32", sT[0], 5)
        e.i("s_cselect_b32", sT[3], 16 * 1280, 0)
        e.i("s_cselect_b32", sT[4], 5, 0)
        e.i("s_sub_u32", sT[4], sT[0], sT[4])
        e.i("s_lshl_b32", sT[4], sT[4], 6)
        e.i("s_cmp_ge_u32", sT[0], 10)
        e.i("s_cselect_b32", sT[5], 0x40000000, 0)
        e.i("s_add_u32", sT[4], sT[4], sT[5])
        e.i("v_add_u32", CO[j], sT[4], t1)
        e.i("v_add_u32", XO[j], sT[3], t0)
        e.i("v_add_u32", XO[j], XO[j], CO[j])
        e.i("s_lshl_b32", sT[0], sT[0], 12)
        e.i("s_add_u32", sT[0], sT[0], sT[2])
        e.i("s_add_u32", sT[0], sT[0], sT[5])
        e.i("v_lshlrev_b32", PO[j], 4, vl)
        e.i("v_add_u32", PO[j], sT[0], PO[j])
    XV = [v(16 + 4 * j, 4) for j in range(3)]
    BV = [v(28 + 4 * j, 4) for j in range(3)]
    for j in range(3):
        e.i("buffer_load_dwordx4", XV[j], XO[j], sX, 0, mods="offen")
        e.i("buffer_load_dwordx4", BV[j], CO[j], sMISC, 0, mods="offen")
    e.wait(vm=0)
    e.i("s_barrier")
    srd(e, sMISC, pDBG, 256)
    e.i("s_cmp_lg_u32", sWAVE, 0)
    e.i("s_cbranch_scc1", "K2_polled")
    e.i("s_lshl_b32", sT[0], sTILE, 2)
    e.i("v_mov_b32", t0, sT[0])
    e.i("v_mov_b32", t1, 1)
    e.i("s_mov_b64", s(64, 2), "exec")
    e.i("s_mov_b64", "exec", 1)
    e.i("buffer_atomic_add", t1, t0, sMISC, 0, mods="offen")
    e.i("s_mov_b32", sT[1], 1 << 20)
    e.label("K2_poll")
    e.i("buffer_load_dword", t1, t0, sMISC, 0, mods="offen sc1")
    e.wait(vm=0)
    e.i("v_readfirstlane_b32", sT[0], t1)
    e.i("s_sub_u32", sT[1], sT[1], 1)
    e.i("s_cmp_eq_u32", sT[1], 0)
    e.i("s_cbranch_scc1", "K2_pollx")
    e.i("s_cmp_lt_u32", sT[0], 4)
    e.i("s_cbranch_scc1", "K2_poll")
    e.label("K2_pollx")
    e.i("s_mov_b64", "exec", s(64, 2))
    e.label("K2_polled")
    e.i("s_barrier")
    stamp(e, 4, on)
    PV = [[a(0 + (j * 8 + k) * 4, 4) for k in range(8)] for j in range(3)]
    PV = [[v(40 + (j * 8 + k) * 4, 4) for k in range(8)] for j in range(3)]
    e.i("s_mov_b32", sT[4], PM_OFF - PS_OFF)
    for j in range(3):
        for k in range(8):
            e.i("buffer_load_dwordx4", PV[j][k], PO[j], sP, sT[4] if k >= 4 else 0,
                mods=f"offen offset:{1024 * (k & 3)} sc1")
    e.i("s_mov_b32", sT[0], f2u(-1.4426950408889634))
    SS, MM, EE = v(136, 8), v(144, 8), v(152, 8)
    tmp = v(160, 8)
    for j in range(3):
        e.wait(vm=8 * (2 - j) + j)
        for h in range(4):
            lo16(e, SS[2 * h], PV[j][0][h])
            hi16(e, SS[2 * h + 1], PV[j][0][h])
            lo16(e, MM[2 * h], BV[j][h])
            hi16(e, MM[2 * h + 1], BV[j][h])
        for k in range(1, 8):
            dst = SS if k < 4 else MM
            for h in range(4):
                lo16(e, tmp[2 * h], PV[j][k][h])
                hi16(e, tmp[2 * h + 1], PV[j][k][h])
            for h in range(4):
                e.i("v_pk_add_f32", dst.sub(2 * h, 2), dst.sub(2 * h, 2), tmp.sub(2 * h, 2))
        for q in range(8):
            e.i("v_mul_f32", EE[q], sT[0], MM[q])
        for q in range(8):
            e.i("v_exp_f32", EE[q], EE[q])
        for h in range(4):
            e.i("v_pk_add_f32", EE.sub(2 * h, 2), EE.sub(2 * h, 2), 1.0)
        for q in range(8):
            e.i("v_rcp_f32", EE[q], EE[q])
        for h in range(4):
            e.i("v_pk_mul_f32", MM.sub(2 * h, 2), MM.sub(2 * h, 2), EE.sub(2 * h, 2))
        for h in range(4):
            lo16(e, tmp[2 * h], XV[j][h])
            hi16(e, tmp[2 * h + 1], XV[j][h])
        for h in range(4):
            e.i("v_pk_fma_f32", SS.sub(2 * h, 2), SS.sub(2 * h, 2), MM.sub(2 * h, 2), tmp.sub(2 * h, 2))
        for h in range(4):
            e.i("v_cvt_pk_bf16_f32", XV[j][h], SS[2 * h], SS[2 * h + 1])
        e.i("buffer_store_dwordx4", XV[j], XO[j], sOUT, 0, mods="offen")
    stamp(e, 5, on)
    b.add(e)
    tr += [x for x in e.ins]
    if on:
        b.wait(vm=0, lgkm=0)
        srd_off(b, sMISC, pWS, 0x4100000, 1 << 20)
        b.i("s_lshl_b32", sT[0], s(2), 2)
        b.i("s_add_u32", sT[0], sT[0], sWAVE)
        b.i("s_lshl_b32", sT[0], sT[0], 6)
        b.i("v_mov_b32", v(1), sT[0])
        for k in range(6):
            b.i("v_mov_b32", v(2), s(80 + 2 * k))
            b.i("buffer_store_dword", v(2), v(1), sMISC, 0, mods=f"offen offset:{4 * k}")
            b.nop(1)
    b.wait(vm=0)
    b.label("K2_end")
    b.i("s_endpgm")
    check(tr, "K2")
    return b


def kernel(on=False):
    return dict(label="outp_kernel", grid=256, block=256, lds=R * STG, body=build(on).text(), nvgpr=384, accum=256)


if __name__ == "__main__":
    print(len(build().ins))
```

```python
from asmgen import *
from common import srd

XN_OFF = 0x0
XN_SIZE = 20 * 128 * 1024
R2_OFF = 0x280000
H_OFF = 0x300000
H_SIZE = 54 * 128 * 1024
O_OFF = 0x1000000
O_SIZE = 128 * 128 * 1024
PS_OFF = 0x2000000
PM_OFF = 0x2C00000
P_SIZE = 64 * 4 * 10 * 4 * 1024

KA = dict(x=0, k=8, v=16, wq=24, wo=32, w1=48, b1=56, w2=64, b2=72, out=80, dbg=88, ws=96)


def ld_arg(b, dst, name):
    b.i("s_load_dwordx2", dst, s(0, 2), KA[name])


def srd_off(b, dst, base, off, nbytes):
    b.i("s_add_u32", dst[0], base[0], off)
    b.i("s_addc_u32", dst[1], base[1], 0)
    b.i("s_mov_b32", dst[2], nbytes)
    b.i("s_mov_b32", dst[3], 0x00020000)


def lo16(b, dst, src):
    b.i("v_lshlrev_b32", dst, 16, src)


def hi16(b, dst, src):
    b.i("v_and_b32", dst, 0xFFFF0000, src)


def dpp_row_sum(b, r, tmp=None):
    for sh in (8, 4, 2, 1):
        b.nop(2)
        b.i("v_add_f32_dpp", r, r, r, mods=f"row_ror:{sh} row_mask:0xf bank_mask:0xf")


def bf16_round(b, r, tmp):
    b.i("v_cvt_pk_bf16_f32", tmp, r, r)
    b.i("v_lshlrev_b32", r, 16, tmp)
```

```python
import sys
from common import *
import k0, k1
try:
    import k2
except ImportError:
    k2 = None


def make(which="012", on=False, thr=None):
    ks = []
    if "0" in which:
        ks.append(dict(label="ln_kernel", grid=256, block=128, lds=0, body=k0.build().text(), nvgpr=128, accum=128))
    if "1" in which:
        b = k1.build(on) if thr is None else k1.build(on, thr)
        ks.append(dict(label="attn_kernel", grid=256, block=256, lds=163840, body=b.text(), nvgpr=512, accum=256))
    if "2" in which and k2 is not None:
        ks.append(k2.kernel(on))
    return assemble_file(ks)


if __name__ == "__main__":
    out = sys.argv[1]
    which = sys.argv[2] if len(sys.argv) > 2 else "012"
    on = "stamp" in sys.argv
    thr = -1.0 if "fb" in sys.argv else None
    open(out, "w").write(make(which, on, thr))
```

```python
from layout import *
import attn16 as A
from attn16 import (MF, vKD0, vKD1, vVD0, vVD1, vKA, vVA, L, NM, S, P, Q, O, KF, VF, sKSRD, sVSRD, sTOFF, sMK, sMV,
                    dma_k, dma_v, k_read, v_read, mf_pv, sm_exp, sm_add, sm_cvt)

sWQ, sW1, sXN, sO, sH, sMISC = s(12, 4), s(16, 4), s(20, 4), s(24, 4), s(28, 4), s(32, 4)
sHEAD, sQB, sWAVE = s(39), s(40), s(41)
sWQo, sW1o, sXNo = s(44), s(45), s(46)
sMWQ, sMW1 = s(47), s(48)
sCNT = s(49)
sMKp, sMVp = s(50), s(51)
sSC = s(52, 2)
sT = [s(54), s(55), s(42), s(43)]
pX = s(64, 2)
pA, pB, pC, pD, pE, pF = s(66, 2), s(68, 2), s(70, 2), s(72, 2), s(74, 2), s(76, 2)
sC = [s(56 + i) for i in range(8)]
WRING = 114688
vWQD = [v(17), v(18)]
vW1D = v(19)
vXN = v(20)
vWQA = [v(21 + i) for i in range(4)]
vW1A = [v(25 + i) for i in range(4)]
vDUM = v(29)
QACC = lambda qt, ks, p: v(48 + (qt * 4 + ks) * 8 + 4 * p, 4)
HACC = lambda qt, ft: v(176 + (qt * 4 + ft) * 4, 4)
ABUF = [[a(128 + bf * 48 + f * 4, 4) for f in range(12)] for bf in range(2)]
BBUF = [[a(224 + qt * 4, 4) for qt in range(4)], [a(240 + qt * 4, 4) for qt in range(4)],
        [v(240 + qt * 4, 4) for qt in range(4)], [v(32 + qt * 4, 4) for qt in range(4)]]
THR = 2.0 ** 60


def a_read(stage, buf, n):
    f, x = n >> 1, n & 1
    if f < 8:
        ks, p = f >> 1, f & 1
        return I("ds_read_b64_tr_b16", ABUF[buf][f].sub(2 * x, 2), vWQA[ks],
                 mods=f"offset:{stage * 12288 + 1024 * x + 8 * p}")
    ft = f - 8
    return I("ds_read_b64_tr_b16", ABUF[buf][f].sub(2 * x, 2), vW1A[ft], mods=f"offset:{stage * 12288 + 512 * x}")


def wq_dma(n):
    return I("buffer_load_dwordx4", vWQD[n], sWQ, sWQo, mods=f"offen offset:{1024 * n} lds")


def w1_dma():
    return I("buffer_load_dwordx4", vW1D, sW1, sW1o, mods="offen lds")


def xn_load(buf, qt):
    return I("buffer_load_dwordx4", BBUF[buf][qt], vXN, sXN, sXNo, mods=f"offen offset:{1024 * qt}")


def pro_mfma(buf_a, buf_b, g):
    f, qt = g >> 2, g & 3
    acc = QACC(qt, f >> 1, f & 1) if f < 8 else HACC(qt, f - 8)
    return I(MF, acc, ABUF[buf_a][f], BBUF[buf_b][qt], acc)


def pro_step(u):
    sal = {g: [] for g in range(48)}
    mem = {g: [] for g in range(48)}
    sal[0].append(I("s_barrier"))
    for n in range(24):
        mem[1 + n].append(a_read((u + 1) % 4, (u + 1) & 1, n))
    if u == 0:
        sal[25].append(I("s_mov_b32", "m0", sMKp))
    elif u == 2:
        sal[25].append(I("s_mov_b32", "m0", sMVp))
    else:
        sal[25].append(I("s_mov_b32", "m0", sMKp if u == 1 else sMVp))
    mem[26].append(dma_k(u) if u < 2 else dma_v(u - 2))
    sal[28].append(I("s_add_u32", "m0", sMWQ, u * 12288))
    mem[29].append(wq_dma(0))
    mem[31].append(wq_dma(1))
    sal[33].append(I("s_add_u32", "m0", sMW1, u * 12288))
    mem[34].append(w1_dma())
    for qt in range(4):
        mem[36 + 2 * qt].append(xn_load((u + 3) % 4, qt))
    sal[43].append(I("s_add_u32", sWQo, sWQo, 262144))
    sal[44].append(I("s_add_u32", sW1o, sW1o, 110592))
    sal[45].append(I("s_add_u32", sXNo, sXNo, 131072))
    if u == 3:
        sal[38].append(I("s_add_u32", sMKp, sMKp, 8192))
        sal[39].append(I("s_add_u32", sMVp, sMVp, 8192))
        sal[40].append(I("s_add_u32", sTOFF, sTOFF, 8192))
        sal[41].append(I("s_sub_u32", sCNT, sCNT, 1))
        sal[46].append(I("s_cmp_lg_u32", sCNT, 0))
    sal[47].append(W(vm=16, lgkm=0))
    b = Block()
    for g in range(48):
        b.add(pro_mfma(u & 1, u, g))
        b.add(sal[g])
        b.add(mem[g])
    return b


def xlane_op(b, op, r, t):
    b.i("v_mov_b32", t, r)
    b.nop(2)
    b.i("v_permlane32_swap_b32", r, t)
    b.nop(1)
    b.i(op, r, r, t)
    b.i("v_mov_b32", t, r)
    b.nop(2)
    b.i("v_permlane16_swap_b32", r, t)
    b.nop(1)
    b.i(op, r, r, t)


def xlane_op4(b, op, rs, ts):
    for swap in ("v_permlane32_swap_b32", "v_permlane16_swap_b32"):
        for r, t in zip(rs, ts):
            b.i("v_mov_b32", t, r)
        for r, t in zip(rs, ts):
            b.i(swap, r, t)
        for r, t in zip(rs, ts):
            b.i(op, r, r, t)


def qk_raw(b):
    for qt in range(4):
        for kt in range(2):
            for ks in range(4):
                b.i(MF, S[qt][kt], KF[kt][ks], Q[qt][ks], 0 if ks == 0 else S[qt][kt])


def tile_max(b, dst):
    for qt in range(4):
        s0, s1 = S[qt][0], S[qt][1]
        b.i("v_max3_f32", dst[qt], s0[0], s0[1], s0[2])
        b.i("v_max3_f32", dst[qt], dst[qt], s0[3], s1[0])
        b.i("v_max3_f32", dst[qt], dst[qt], s1[1], s1[2])
        b.i("v_max_f32", dst[qt], dst[qt], s1[3])


def stamp(b, n, on):
    if on:
        b.i("s_memrealtime", s(80 + 2 * n, 2))


def setup(b, on):
    ld_arg(b, pA, "k")
    ld_arg(b, pB, "v")
    ld_arg(b, pC, "wq")
    ld_arg(b, pD, "w1")
    ld_arg(b, pX, "ws")
    ld_arg(b, pE, "b1")
    b.i("s_cmp_ge_u32", s(2), 256)
    b.i("s_cbranch_scc1", "K1_end")
    stamp(b, 0, on)
    b.i("s_and_b32", sT[0], s(2), 7)
    b.i("s_lshl_b32", sT[0], sT[0], 2)
    b.i("s_bfe_u32", sT[1], s(2), 0x20003)
    b.i("s_add_u32", sHEAD, sT[0], sT[1])
    b.i("s_lshr_b32", sQB, s(2), 5)
    vl, vw, t0, t1, t2, t3 = v(200), v(201), v(202), v(203), v(204), v(205)
    b.i("v_and_b32", vl, 63, v(0))
    b.i("v_lshrrev_b32", vw, 6, v(0))
    b.i("s_nop", 0)
    b.i("v_readfirstlane_b32", sWAVE, vw)
    b.i("v_lshrrev_b32", t0, 4, vl)
    b.i("v_and_b32", t1, 15, vl)
    b.i("v_lshlrev_b32", t2, 2, t0)
    b.i("v_xor_b32", t2, t1, t2)
    b.i("v_lshlrev_b32", t2, 4, t2)
    b.i("v_lshl_add_u32", t3, vw, 3, t0)
    b.i("v_lshl_add_u32", t2, t3, 13, t2)
    b.i("s_lshl_b32", sT[0], sHEAD, 8)
    b.i("v_add_u32", vWQD[0], sT[0], t2)
    b.i("v_add_u32", vWQD[1], 4 * 8192 - 1024, vWQD[0])
    b.i("v_lshrrev_b32", t2, 3, vl)
    b.i("v_lshl_add_u32", t2, vw, 3, t2)
    b.i("v_mul_u32_u24", vW1D, 3456, t2)
    b.i("v_and_b32", t2, 1, t0)
    b.i("v_and_b32", t3, 1, vw)
    b.i("v_lshl_add_u32", t2, t3, 1, t2)
    b.i("v_lshlrev_b32", t2, 1, t2)
    b.i("v_and_b32", t3, 7, vl)
    b.i("v_xor_b32", t2, t2, t3)
    b.i("v_lshl_add_u32", vW1D, t2, 4, vW1D)
    b.i("s_lshl_b32", sT[0], sHEAD, 7)
    b.i("v_add_u32", vW1D, sT[0], vW1D)
    b.i("s_lshl_b32", sT[0], sQB, 4)
    b.i("s_lshl_b32", sT[1], sWAVE, 2)
    b.i("s_add_u32", sT[2], sT[0], sT[1])
    b.i("s_lshl_b32", sT[0], sT[2], 10)
    b.i("v_lshlrev_b32", vXN, 4, vl)
    b.i("v_add_u32", vXN, sT[0], vXN)
    b.wait(lgkm=0)
    srd(b, sWQ, pC, 640 * 8192)
    srd(b, sW1, pD, 640 * 3456)
    b.i("s_cmp_lt_u32", sHEAD, 27)
    b.i("s_cselect_b32", sW1[2], 640 * 3456, 0)
    srd_off(b, sXN, pX, XN_OFF, XN_SIZE)
    b.i("s_lshl_b32", sT[0], sWAVE, 11)
    b.i("s_add_u32", sMWQ, sT[0], WRING)
    b.i("s_mov_b32", sMK, sT[0])
    b.i("s_add_u32", sMV, sT[0], 65536)
    b.i("s_lshl_b32", sT[0], sWAVE, 10)
    b.i("s_add_u32", sMW1, sT[0], WRING + 8192)
    b.i("s_mov_b32", sWQo, 0)
    b.i("s_mov_b32", sW1o, 0)
    b.i("s_mov_b32", sXNo, 0)
    for st in range(4):
        if st == 3:
            b.i("buffer_load_dword", vDUM, vXN, sXN, 0, mods="offen")
        b.i("s_add_u32", "m0", sMWQ, st * 12288)
        b.i("s_nop", 0)
        b.add(wq_dma(0))
        b.add(wq_dma(1))
        b.i("s_add_u32", "m0", sMW1, st * 12288)
        b.i("s_add_u32", sWQo, sWQo, 262144)
        b.add(w1_dma())
        b.i("s_add_u32", sW1o, sW1o, 110592)
        if st >= 1:
            for qt in range(4):
                b.add(xn_load(st - 1, qt))
            b.i("s_add_u32", sXNo, sXNo, 131072)
    b.i("s_lshl_b32", sT[0], sHEAD, 19)
    srd_off(b, sKSRD, pA, sT[0], 524288)
    srd_off(b, sVSRD, pB, sT[0], 524288)
    A.addr_setup(b, vl, vw, [t0, t1, t2, t3])
    b.i("v_lshrrev_b32", t0, 4, vl)
    b.i("v_bfe_u32", t1, vl, 2, 2)
    b.i("v_and_b32", t2, 3, vl)
    b.i("v_lshl_add_u32", t3, t0, 3, t1)
    b.i("v_lshlrev_b32", vWQA[0], 8, t3)
    b.i("v_lshl_add_u32", vWQA[0], t1, 6, vWQA[0])
    b.i("v_lshl_add_u32", vWQA[0], t2, 4, vWQA[0])
    b.i("v_add_u32", vWQA[0], WRING, vWQA[0])
    for ks in range(1, 4):
        b.i("v_xor_b32", vWQA[ks], 64 * ks, vWQA[0])
    b.i("v_lshlrev_b32", vW1A[0], 7, t3)
    b.i("v_lshl_add_u32", vW1A[0], t2, 3, vW1A[0])
    b.i("v_lshrrev_b32", t1, 1, t1)
    b.i("v_and_b32", t0, 1, t0)
    b.i("v_lshl_add_u32", t1, t0, 1, t1)
    b.i("v_lshl_add_u32", vW1A[0], t1, 5, vW1A[0])
    b.i("v_add_u32", vW1A[0], WRING + 8192, vW1A[0])
    for ft in range(1, 4):
        b.i("v_xor_b32", vW1A[ft], 32 * ft, vW1A[0])
    b.i("s_mov_b32", sMKp, sMK)
    b.i("s_mov_b32", sMVp, sMV)
    b.i("s_mov_b32", sTOFF, 0)
    b.i("s_mov_b32", sCNT, 5)
    b.i("s_mov_b32", sSC[0], f2u(128 ** -0.5 * 1.4426950408889634))
    b.i("s_mov_b32", sSC[1], f2u(128 ** -0.5 * 1.4426950408889634))
    for r in range(48, 240):
        b.i("v_mov_b32", v(r), 0)
    for r in range(128):
        b.i("v_accvgpr_write_b32", a(r), 0)
    stamp(b, 1, on)
    b.wait(vm=22)
    b.i("s_barrier")
    for n in range(24):
        b.add(a_read(0, 0, n))
    b.wait(vm=15, lgkm=0)


def q_epilogue(b):
    for j in (5, 6):
        b.i("s_add_u32", "m0", sMK, j * 8192)
        b.i("s_nop", 0)
        b.add(dma_k(0))
        b.add(dma_k(1))
        b.i("s_add_u32", "m0", sMV, j * 8192)
        b.i("s_nop", 0)
        b.add(dma_v(0))
        b.add(dma_v(1))
        b.i("s_add_u32", sTOFF, sTOFF, 8192)
    for n in range(8):
        b.add(k_read(0, n))
    for j in range(63, -1, -1):
        src = v(48 + 2 * j, 2)
        b.i("v_pk_mul_f32", src, src, sSC)
        if j < 63:
            pj = v(48 + 2 * (j + 1), 2)
            b.i("v_cvt_pk_bf16_f32", v(112 + j + 1), pj[0], pj[1])
    b.i("v_cvt_pk_bf16_f32", v(112), v(48), v(49))
    b.wait(lgkm=0)
    b.nop(2)
    qk_raw(b)
    M = [v(92 + i) for i in range(4)]
    T = [v(88 + i) for i in range(4)]
    b.nop(8)
    tile_max(b, M)
    xlane_op4(b, "v_max_f32", M, T)
    for qt in range(4):
        for r in range(4):
            b.i("v_mul_f32", NM[qt][r], -1.0, M[qt])
        b.i("v_mov_b32", L[qt], 0)
    b.nop(2)


def tail(b):
    b.add(sm_add(1, 11))
    b.add(sm_cvt(1, 5))
    for e in range(12, 16):
        b.add(sm_exp(1, e))
    for e in range(12, 16):
        b.add(sm_add(1, e))
    b.add(sm_cvt(1, 6))
    b.add(sm_cvt(1, 7))
    b.nop(2)
    for dt in range(8):
        for qt in (2, 3):
            b.add(mf_pv(qt, dt))


RINV2 = [v(92 + i) for i in range(4)]
B1P = v(96, 8)
B1F = v(40, 16)


def tail_loads(b):
    vl, t0, t1 = v(88), v(89), v(90)
    b.i("v_and_b32", vl, 63, v(0))
    srd_off(b, sMISC, pX, R2_OFF, 8192)
    b.i("s_lshl_b32", sT[0], sT[2], 6)
    b.i("v_and_b32", t0, 15, vl)
    b.i("v_lshl_add_u32", t0, t0, 2, sT[0])
    for qt in range(4):
        b.i("buffer_load_dword", RINV2[qt], t0, sMISC, 0, mods=f"offen offset:{64 * qt}")
    srd(b, sW1, pE, 1728 * 2)
    b.i("s_lshl_b32", sT[0], sHEAD, 7)
    b.i("v_lshrrev_b32", t1, 4, vl)
    b.i("v_lshl_add_u32", t1, t1, 3, sT[0])
    for ft in range(4):
        b.i("buffer_load_dwordx2", B1P.sub(2 * ft, 2), t1, sW1, 0, mods=f"offen offset:{32 * ft}")


def o_epilogue(b):
    T = [v(88 + i) for i in range(4)]
    RI = [v(24 + 2 * i) for i in range(4)]
    srd_off(b, sO, pX, O_OFF, O_SIZE)
    b.i("s_lshl_b32", sT[0], sHEAD, 19)
    b.i("s_lshl_b32", sT[1], sT[2], 10)
    b.i("s_add_u32", sT[0], sT[0], sT[1])
    vst = v(21)
    b.i("v_and_b32", vst, 63, v(0))
    b.i("v_lshlrev_b32", vst, 4, vst)
    b.i("v_add_u32", vst, sT[0], vst)
    for c in range(1, 4):
        b.i("s_mov_b32", sC[c], c * 131072)
    for qt in range(4):
        b.i("v_rcp_f32", RI[qt], L[qt])
    n = 0
    for c in range(4):
        for qt in range(4):
            w = v(40 + 8 * (n & 3), 8)
            pk = v(72 + 4 * (n & 3), 4)
            n += 1
            for t in range(2):
                for r in range(4):
                    b.i("v_accvgpr_read_b32", w[4 * t + r], O[2 * c + t][qt][r])
            rr = Reg("v", RI[qt].idx, 2)
            for h in range(4):
                b.i("v_pk_mul_f32", w.sub(2 * h, 2), w.sub(2 * h, 2), rr, mods="op_sel_hi:[1,0]")
            for h in range(4):
                b.i("v_cvt_pk_bf16_f32", pk[h], w[2 * h], w[2 * h + 1])
            b.i("buffer_store_dwordx4", pk, vst, sO, sC[c] if c else 0, mods=f"offen offset:{1024 * qt} sc1")


def h_epilogue(b):
    srd_off(b, sH, pX, H_OFF, H_SIZE)
    b.i("s_cmp_lt_u32", sHEAD, 27)
    b.i("s_cselect_b32", sH[2], H_SIZE, 0)
    b.i("s_lshl_b32", sT[0], sHEAD, 18)
    b.i("s_lshl_b32", sT[1], sT[2], 10)
    b.i("s_add_u32", sT[0], sT[0], sT[1])
    vst = v(22)
    b.i("v_and_b32", vst, 63, v(0))
    b.i("v_lshlrev_b32", vst, 4, vst)
    b.i("v_add_u32", vst, sT[0], vst)
    c1 = -2.0 * 1.4426950408889634 * 0.7978845608028654
    b.i("s_mov_b32", sC[4], f2u(c1))
    b.i("s_mov_b32", sC[5], f2u(c1))
    b.i("s_mov_b32", sC[6], f2u(c1 * 0.044715))
    b.i("s_mov_b32", sC[7], f2u(c1 * 0.044715))
    pc1, pc3 = Reg("s", sC[4].idx, 2), Reg("s", sC[6].idx, 2)
    b.wait(vm=16)
    for ft in range(4):
        lo16(b, B1F[4 * ft], B1P[2 * ft])
        hi16(b, B1F[4 * ft + 1], B1P[2 * ft])
        lo16(b, B1F[4 * ft + 2], B1P[2 * ft + 1])
        hi16(b, B1F[4 * ft + 3], B1P[2 * ft + 1])
    RV = [v(24 + 2 * i, 2) for i in range(4)]
    for qt in range(4):
        b.i("v_mov_b32", RV[qt][0], RINV2[qt])
    C1 = v(104, 2)
    b.i("v_mov_b32", C1[0], sC[4])
    b.i("v_mov_b32", C1[1], sC[4])
    n = 0
    for c in range(2):
        for qt in range(4):
            U = v(56, 8)
            Wt = v(64, 8)
            pk = v(72 + 4 * (n & 3), 4)
            n += 1
            for h in range(4):
                ft, r = 2 * c + (h >> 1), 2 * (h & 1)
                b.i("v_pk_fma_f32", U.sub(2 * h, 2), HACC(qt, ft).sub(r, 2), RV[qt], B1F.sub(4 * ft + r, 2),
                    mods="op_sel_hi:[1,0,1]")
            for h in range(4):
                b.i("v_pk_mul_f32", Wt.sub(2 * h, 2), U.sub(2 * h, 2), U.sub(2 * h, 2))
            for h in range(4):
                b.i("v_pk_fma_f32", Wt.sub(2 * h, 2), Wt.sub(2 * h, 2), pc3, C1)
            for h in range(4):
                b.i("v_pk_mul_f32", Wt.sub(2 * h, 2), Wt.sub(2 * h, 2), U.sub(2 * h, 2))
            for e in range(8):
                b.i("v_exp_f32", Wt[e], Wt[e])
            for h in range(4):
                b.i("v_pk_add_f32", Wt.sub(2 * h, 2), Wt.sub(2 * h, 2), 1.0)
            for e in range(8):
                b.i("v_rcp_f32", Wt[e], Wt[e])
            for h in range(4):
                b.i("v_pk_mul_f32", U.sub(2 * h, 2), U.sub(2 * h, 2), Wt.sub(2 * h, 2))
            for h in range(4):
                b.i("v_cvt_pk_bf16_f32", pk[h], U[2 * h], U[2 * h + 1])
            b.i("buffer_store_dwordx4", pk, vst, sH, sC[1] if c else 0, mods=f"offen offset:{1024 * qt} sc1")


def fallback(b, t0=105, end_barrier=False):
    M = [v(21), v(22), v(23), v(88)]
    TM = [v(89 + i) for i in range(3)] + [v(104)]
    T = [v(t0 + i) for i in range(4)]
    AL = [v(24 + i) for i in range(4)]
    b.label("K1_fb")
    for qt in range(4):
        b.i("v_mov_b32", M[qt], 0xFF800000)
        b.i("v_mov_b32", L[qt], 0)
    for r in range(128):
        b.i("v_accvgpr_write_b32", a(r), 0)
    b.i("s_mov_b32", sTOFF, 0)
    b.wait(vm=0, lgkm=0)
    b.label("K1_fb_loop")
    body = Block()
    body.i("s_barrier")
    body.i("s_mov_b32", "m0", sMK)
    body.i("s_nop", 0)
    body.add(dma_k(0))
    body.add(dma_k(1))
    body.i("s_mov_b32", "m0", sMV)
    body.i("s_nop", 0)
    body.add(dma_v(0))
    body.add(dma_v(1))
    body.wait(vm=0)
    body.i("s_barrier")
    for n in range(8):
        body.add(k_read(0, n))
    body.wait(lgkm=0)
    for r in range(16):
        body.add(v_read(0, r))
    qk_raw(body)
    body.nop(8)
    tile_max(body, TM)
    xlane_op4(body, "v_max_f32", TM, T)
    for qt in range(4):
        body.i("v_max_f32", TM[qt], TM[qt], M[qt])
    for qt in range(4):
        body.i("v_sub_f32", AL[qt], M[qt], TM[qt])
    for qt in range(4):
        body.i("v_exp_f32", AL[qt], AL[qt])
        body.i("v_mov_b32", M[qt], TM[qt])
    for qt in range(4):
        body.i("v_mul_f32", L[qt], L[qt], AL[qt])
    for h in range(2):
        for e in range(16):
            r = A.sreg(h, e)
            body.i("v_sub_f32", r, r, M[2 * h + (e >> 3)])
        for e in range(16):
            body.add(sm_exp(h, e))
        body.nop(1)
        for e in range(16):
            body.add(sm_add(h, e))
        for k in range(8):
            body.add(sm_cvt(h, k))
    for dt in range(8):
        for qt in range(4):
            for r in range(4):
                body.i("v_accvgpr_read_b32", T[r], O[dt][qt][r])
            for r in range(4):
                body.i("v_mul_f32", T[r], T[r], AL[qt])
            for r in range(4):
                body.i("v_accvgpr_write_b32", O[dt][qt][r], T[r])
    body.wait(lgkm=0)
    body.nop(2)
    for dt in range(8):
        for qt in range(4):
            body.add(mf_pv(qt, dt))
    body.i("s_add_u32", sTOFF, sTOFF, 8192)
    body.i("s_cmp_lt_u32", sTOFF, 524288)
    body.nop(8)
    check(body.ins + body.ins, "K1 fallback")
    b.add(body)
    b.i("s_cbranch_scc1", "K1_fb_loop")
    T4 = [v(88 + i) for i in range(4)]
    xlane_op4(b, "v_add_f32", L, T4)
    if end_barrier:
        b.i("s_barrier")
    b.i("s_branch", "K1_norm")


def stamps_out(b, n):
    b.wait(vm=0, lgkm=0)
    srd_off(b, sMISC, pX, 0x4000000, 1 << 20)
    b.i("s_lshl_b32", sT[0], s(2), 2)
    b.i("s_add_u32", sT[0], sT[0], sWAVE)
    b.i("s_lshl_b32", sT[0], sT[0], 6)
    b.i("v_mov_b32", v(1), sT[0])
    for k in range(n):
        b.i("v_mov_b32", v(2), s(80 + 2 * k))
        b.i("buffer_store_dword", v(2), v(1), sMISC, 0, mods=f"offen offset:{4 * k}")
        b.nop(1)


def build(on=False, thr=THR):
    b = Block()
    tr = []
    pre = Block()
    setup(pre, on)
    b.add(pre)
    tr += pre.ins
    stamp(b, 2, on)
    b.label("K1_pro")
    steps = Block()
    for u in range(4):
        steps.add(pro_step(u))
    b.add(steps)
    b.i("s_cbranch_scc1", "K1_pro")
    tr += steps.ins * 5
    stamp(b, 3, on)
    qe = Block()
    q_epilogue(qe)
    b.add(qe)
    tr += qe.ins
    stamp(b, 4, on)
    it0 = A.iteration(0, g2=False, sm1_prev=False)
    b.add(it0)
    tr += it0.ins
    b.i("s_mov_b32", sCNT, 8)
    b.i("s_branch", "K1_u1")
    b.raw(".p2align 6")
    b.label("K1_loop")
    its = [A.iteration(u) for u in range(8)]
    b.add(its[0])
    b.label("K1_u1")
    for u in range(1, 8):
        b.add(its[u])
        tr += its[u].ins
    for u in range(8):
        tr += its[u].ins
    b.i("s_sub_u32", sCNT, sCNT, 1)
    b.i("s_cmp_lg_u32", sCNT, 0)
    b.i("s_cbranch_scc1", "K1_loop")
    stamp(b, 5, on)
    e = Block()
    tail_loads(e)
    tail(e)
    T4 = [v(88 + i) for i in range(4)]
    xlane_op4(e, "v_add_f32", L, T4)
    e.i("s_mov_b32", sT[0], f2u(thr))
    e.i("v_cmp_nle_f32", "vcc", L[0], sT[0]) if False else None
    e.i("v_max3_f32", T4[0], L[0], L[1], L[2])
    e.i("v_cmp_nle_f32", s(66, 2), L[0], sT[0])
    e.i("v_cmp_nle_f32", s(68, 2), L[1], sT[0])
    e.i("v_cmp_nle_f32", s(70, 2), L[2], sT[0])
    e.i("v_cmp_nle_f32", s(72, 2), L[3], sT[0])
    e.nop(2)
    e.i("s_or_b64", s(66, 2), s(66, 2), s(68, 2))
    e.i("s_or_b64", s(70, 2), s(70, 2), s(72, 2))
    e.i("s_or_b64", s(66, 2), s(66, 2), s(70, 2))
    e.i("s_cmp_lg_u64", s(66, 2), 0)
    e.i("s_cselect_b32", sT[0], 1, 0)
    e.i("s_lshl_b32", sT[1], sWAVE, 2)
    e.i("v_mov_b32", T4[0], sT[0])
    e.i("v_mov_b32", T4[1], sT[1])
    e.i("v_add_u32", T4[1], 140 * 1024, T4[1])
    e.i("ds_write_b32", T4[1], T4[0])
    e.i("v_mov_b32", T4[1], 140 * 1024)
    e.wait(lgkm=0)
    e.i("s_barrier")
    e.i("ds_read_b128", v(104, 4), T4[1])
    e.wait(lgkm=0)
    e.i("v_or3_b32", T4[0], v(104), v(105), v(106))
    e.i("v_or_b32", T4[0], T4[0], v(107))
    e.nop(1)
    e.i("v_readfirstlane_b32", sT[0], T4[0])
    e.i("s_cmp_lg_u32", sT[0], 0)
    e.i("s_cbranch_scc1", "K1_fb")
    e.label("K1_norm")
    e.nop(8)
    o_epilogue(e)
    stamp(e, 6, on)
    h_epilogue(e)
    stamp(e, 7, on)
    b.add(e)
    tr += e.ins
    if on:
        stamps_out(b, 8)
    b.wait(vm=0)
    b.label("K1_end")
    b.i("s_endpgm")
    fallback(b)
    check(tr, "K1")
    return b


if __name__ == "__main__":
    b = build()
    print(len(b.ins))
```

```python
from asmgen import *
from common import srd

XN_OFF = 0x0
XN_SIZE = 20 * 128 * 1024
R2_OFF = 0x280000
H_OFF = 0x300000
H_SIZE = 54 * 128 * 1024
O_OFF = 0x1000000
O_SIZE = 128 * 128 * 1024
PS_OFF = 0x2000000
PM_OFF = 0x2C00000
P_SIZE = 64 * 4 * 10 * 4 * 1024

KA = dict(x=0, k=8, v=16, wq=24, wo=32, w1=48, b1=56, w2=64, b2=72, out=80, dbg=88, ws=96)


def ld_arg(b, dst, name):
    b.i("s_load_dwordx2", dst, s(0, 2), KA[name])


def srd_off(b, dst, base, off, nbytes):
    b.i("s_add_u32", dst[0], base[0], off)
    b.i("s_addc_u32", dst[1], base[1], 0)
    b.i("s_mov_b32", dst[2], nbytes)
    b.i("s_mov_b32", dst[3], 0x00020000)


def lo16(b, dst, src):
    b.i("v_lshlrev_b32", dst, 16, src)


def hi16(b, dst, src):
    b.i("v_and_b32", dst, 0xFFFF0000, src)


def dpp_row_sum(b, r, tmp=None):
    for sh in (8, 4, 2, 1):
        b.nop(2)
        b.i("v_add_f32_dpp", r, r, r, mods=f"row_ror:{sh} row_mask:0xf bank_mask:0xf")


def bf16_round(b, r, tmp):
    b.i("v_cvt_pk_bf16_f32", tmp, r, r)
    b.i("v_lshlrev_b32", r, 16, tmp)

FLAG_OFF = 0x3800000
FLAG_SIZE = 256 * 128
OOB = 0x40000000

sFLG = s(96, 4)
sNONCE = s(78)
sHEAD, sQB, sWAVE = s(39), s(40), s(41)
pWS = s(64, 2)
vFO = v(108)
vFV = v(109)
vFP = v(110)
vFT = v(111)

STAMPS = {}


def stamp(b, name):
    if name in STAMPS:
        b.i("s_memrealtime", s(80 + 2 * STAMPS[name], 2))


FR = dict(o=vFO, v=vFV, p=vFP, t=vFT)


def flag_store(phase=None):
    return I("buffer_store_dword", FR["v"], FR["o"], sFLG, 0, mods="offen sc1")


def set_phase(b, phase):
    b.i("s_add_u32", s(3), sNONCE, phase)
    b.i("v_mov_b32", FR["v"], s(3))


def flag_addr(b, t):
    b.i("v_cmp_eq_u32", "vcc", 0, v(0))
    b.i("s_lshl_b32", s(3), s(2), 7)
    b.i("v_mov_b32", t, s(3))
    b.i("v_mov_b32", FR["o"], OOB)
    b.i("v_cndmask_b32", FR["o"], FR["o"], t, "vcc")
    b.i("s_lshl_b32", s(3), sQB, 12)
    b.i("v_and_b32", t, 31, v(0))
    b.i("v_lshlrev_b32", t, 7, t)
    b.i("v_add_u32", FR["p"], s(3), t)


def poll_load(b, mask):
    b.i("s_mov_b64", "exec", mask)
    b.i("buffer_load_dword", FR["t"], FR["p"], sFLG, 0, mods="offen sc1")
    b.i("s_mov_b64", "exec", -1)


def poll_test(b, mask, phase, tmp=s(100, 2)):
    vFT = FR["t"]
    b.i("v_subrev_u32", vFT, sNONCE, vFT)
    b.i("v_subrev_u32", vFT, phase, vFT)
    b.i("v_cmp_ge_u32", "vcc", 7 - phase, vFT)
    b.nop(4)
    b.i("s_and_b64", tmp, "vcc", mask)
    b.i("s_cmp_eq_u64", tmp, mask)


def poll_loop(b, name, mask, phase, cnt=s(79)):
    b.i("s_mov_b32", cnt, 1 << 16)
    b.label(name)
    poll_load(b, mask)
    b.wait(vm=0)
    poll_test(b, mask, phase)
    b.i("s_cbranch_scc1", name + "_ok")
    b.i("s_sub_u32", cnt, cnt, 1)
    b.i("s_cmp_lg_u32", cnt, 0)
    b.i("s_cbranch_scc1", name)
    b.label(name + "_ok")
```

```python
from layout import *

MF = "v_mfma_f32_16x16x32_bf16"
R = 6
STG = 20480
NM_STEPS, NZ = 7, 23
sW, sB, sP, sX, sOUT, sMISC = s(4, 4), s(8, 4), s(12, 4), s(16, 4), s(20, 4), s(28, 4)
sWo, sBo, sM0 = s(36), s(37), s(38)
sZ, sPO, sROLE, sNT, sRT0 = s(44), s(45), s(46), s(47), s(48)
sMASK = s(50, 2)
sT = [s(54), s(55), s(42), s(43), s(49), s(53)]
pWO, pW2, pX, pOUT, pB2 = (s(66 + 2 * i, 2) for i in range(5))
vWD = [v(192 + j) for j in range(5)]
vB = [v(197), v(198)]
vA = [[v(199), v(200)], [v(201), v(202)]]
vP = v(203)
ACC0 = 112
ACC = lambda nt, qt: v(ACC0 + (qt * 10 + nt) * 4, 4)
NA = 8
AF = [a(224 + 4 * i, 4) for i in range(NA)]
BF = [[[a(128 + (bf * 4 + ks * 2 + qt) * 4, 4) for qt in range(2)] for ks in range(2)] for bf in range(R)]
LOOK = 6
GAPS = [2, 6, 11, 15, 20, 24, 29, 33, 38]
BARG = 27
XO, CO, PO = [v(204 + j) for j in range(3)], [v(207 + j) for j in range(3)], [v(210 + j) for j in range(3)]
XV = [v(16 + 4 * j, 4) for j in range(3)]
BV = [v(28 + 4 * j, 4) for j in range(3)]
PV = [[v(40 + (j * 4 + k) * 4, 4) for k in range(4)] for j in range(3)]
GV = [v(216 + 8 * j, 8) for j in range(3)]
PKT = 96


def tag(i, t):
    i.note = t
    return i


def rd(stage, n, slot, x):
    ks, nt = divmod(n, 10)
    grp, st = divmod(stage, 3)
    off = st * STG + ks * 10240 + x * 5120 + 32 * nt
    return I("ds_read_b64_tr_b16", AF[slot].sub(2 * x, 2), vA[grp][nt & 1], mods=f"offset:{off}")


def w_dma(j):
    return I("buffer_load_dwordx4", vWD[j], sW, sWo, mods=f"offen offset:{1024 * (j & 3)} lds")


def b_load(buf, ks, qt):
    return I("buffer_load_dwordx4", BF[buf][ks][qt], vB[ks], sB, sBo, mods=f"offen offset:{1024 * qt} sc1")


def prefetch_ops(st):
    ops = [(I("s_add_u32", "m0", sM0, st * STG), w_dma(0))]
    ops += [(None, w_dma(1)), (None, w_dma(2)), (None, w_dma(3))]
    ops.append((I("s_add_u32", "m0", sM0, st * STG + 4096), w_dma(4)))
    for ks in range(2):
        for qt in range(2):
            ops.append((None, b_load(st, ks, qt)))
    return ops


def slot(u, n):
    return (20 * u + n) % NA


def vm_chain(name, table):
    vals = sorted(set(table.values()))
    out = []
    base = vals[0]
    for vv in vals[1:]:
        for z in sorted(z for z, x in table.items() if x == vv):
            out.append(I("s_cmp_eq_u32", sZ, z))
            out.append(I("s_cbranch_scc1", f"{name}_{vv}"))
    for vv in vals:
        if vv != base:
            out.append(Label(f"{name}_{vv}"))
        w = W(vm=min(vv, 63))
        w.note = f"vmw{vv}"
        out.append(w)
    return out


def step(u, vmtab):
    sal = {g: [] for g in range(40)}
    mem = {g: [] for g in range(40)}
    for n in range(20):
        m = n + LOOK
        st, mm = (u, m) if m < 20 else ((u + 1) % R, m - 20)
        for x in range(2):
            mem[2 * n + x].append(rd(st, mm, slot(u, m), x))
    for n in range(1, 21):
        sal[2 * n - 1].append(W(lgkm=2 * LOOK - 3))
    if u == 3:
        sal[0] += [I("s_cmp_eq_u32", sZ, 3),
                   I("s_cselect_b32", sW[0], pWO[0], sW[0]), I("s_cselect_b32", sW[1], pWO[1], sW[1]),
                   I("s_cselect_b32", sW[2], 4096 * 1280, sW[2]), I("s_cselect_b32", sWo, sT[4], sWo),
                   I("s_cselect_b32", sB[2], 0, sB[2])]
    if u == 1:
        sal[0] += [I("s_cmp_eq_u32", sZ, 19),
                   I("s_cselect_b32", sW[2], 0, sW[2]), I("s_cselect_b32", sB[2], 0, sB[2])]
    for (sc, me), g in zip(prefetch_ops((u + 4) % R), GAPS):
        if sc is not None:
            sal[g - 1].append(sc)
        mem[g].insert(0, me)
    sal[21].append(I("s_add_u32", sWo, sWo, 81920))
    sal[39].append(I("s_add_u32", sBo, sBo, 262144))
    sal[BARG] += vm_chain(f"P3w{u}", vmtab) + [I("s_barrier")]
    if u == 3:
        sal[30] += [I("s_cmp_ge_u32", sZ, 15), I("s_cselect_b32", s(3), 4, 3)]
        sal[31] += [I("s_add_u32", s(3), s(3), sNONCE)]
        mem[32].append(I("v_mov_b32", vFV, s(3)))
        mem[34].append(tag(flag_store(), "flag"))
    sal[36].append(I("s_add_u32", sZ, sZ, 1))
    b = Block()
    for g in range(40):
        n, qt = g >> 1, g & 1
        ks, nt = divmod(n, 10)
        b.add(I(MF, ACC(nt, qt), AF[slot(u, n)], BF[u][ks][qt], ACC(nt, qt)))
        b.add(sal[g])
        b.add(mem[g])
    return b


def store_partial(b, off_s, zero=False):
    n = 0
    for qt in range(2):
        for c in range(5):
            pk = v(PKT + 4 * (n % 3), 4)
            n += 1
            t0, t1 = ACC(2 * c, qt), ACC(2 * c + 1, qt)
            b.i("v_cvt_pk_bf16_f32", pk[0], t0[0], t0[1])
            b.i("v_cvt_pk_bf16_f32", pk[1], t0[2], t0[3])
            b.i("v_cvt_pk_bf16_f32", pk[2], t1[0], t1[1])
            b.i("v_cvt_pk_bf16_f32", pk[3], t1[2], t1[3])
            ch = qt * 5 + c
            b.i("s_add_u32", sT[0], off_s, ch * 4096)
            if zero:
                b.i("v_mov_b32", t0[0], 0)
            else:
                b.nop(1)
            b.i("v_permlane32_swap_b32", pk[0], pk[2])
            b.i("v_permlane32_swap_b32", pk[1], pk[3])
            if zero:
                b.i("v_mov_b32", t0[1], 0)
                b.i("v_mov_b32", t0[2], 0)
            else:
                b.nop(2)
            b.i("v_permlane16_swap_b32", pk[0], pk[2])
            b.i("v_permlane16_swap_b32", pk[1], pk[3])
            if zero:
                b.i("v_mov_b32", t0[3], 0)
            b.i("buffer_store_dwordx4", pk, vP, sP, sT[0], mods="offen sc1")
            if zero:
                for r in range(4):
                    b.i("v_mov_b32", t1[r], 0)


def args(b):
    ld_arg(b, pWO, "wo")
    ld_arg(b, pW2, "w2")
    ld_arg(b, pX, "x")
    ld_arg(b, pOUT, "out")
    ld_arg(b, pB2, "b2")


def addr(p):
    p.i("s_and_b32", sROLE, s(2), 3)
    p.i("s_bfe_u32", sT[0], s(2), 0x10002)
    p.i("s_bfe_u32", sNT, s(2), 0x20003)
    p.i("s_lshl_b32", sT[1], sQB, 1)
    p.i("s_add_u32", sT[0], sT[0], sT[1])
    p.i("s_lshl_b32", sRT0, sT[0], 3)
    vl, vw, t0, t1, t2, t3 = v(240), v(241), v(242), v(243), v(244), v(245)
    p.i("v_and_b32", vl, 63, v(0))
    p.i("v_lshrrev_b32", vw, 6, v(0))
    p.i("s_mul_i32", sT[1], sNT, 320)
    p.i("v_mul_u32_u24", t0, 320, vw)
    p.i("v_add_u32", t0, t0, vl)
    for j in range(5):
        p.i("v_add_u32", t1, 64 * j, t0)
        p.i("v_mul_u32_u24", t2, 52429, t1)
        p.i("v_lshrrev_b32", t2, 20, t2)
        p.i("v_mul_u32_u24", t3, 20, t2)
        p.i("v_sub_u32", t1, t1, t3)
        p.i("v_bfe_u32", t3, t2, 2, 1)
        p.i("v_lshlrev_b32", t3, 1, t3)
        p.i("v_xor_b32", t1, t1, t3)
        p.i("v_mul_u32_u24", t2, 1280, t2)
        p.i("v_lshl_add_u32", t2, t1, 4, t2)
        if j & 3:
            p.i("v_add_u32", t2, sT[1], t2)
            p.i("v_subrev_u32", vWD[j], 1024 * (j & 3), t2)
        else:
            p.i("v_add_u32", vWD[j], sT[1], t2)
    p.i("s_lshl_b32", sT[0], sWAVE, 1)
    p.i("s_add_u32", sT[0], sT[0], sRT0)
    p.i("s_lshl_b32", sT[0], sT[0], 10)
    p.i("v_lshlrev_b32", vB[0], 4, vl)
    p.i("v_add_u32", vB[0], sT[0], vB[0])
    p.i("v_add_u32", vB[1], 131072, vB[0])
    p.i("v_lshrrev_b32", t0, 4, vl)
    p.i("v_bfe_u32", t1, vl, 2, 2)
    p.i("v_lshl_add_u32", t1, t0, 2, t1)
    p.i("v_mul_u32_u24", t1, 320, t1)
    p.i("v_and_b32", t2, 3, vl)
    p.i("v_lshl_add_u32", t1, t2, 3, t1)
    p.i("v_and_b32", t0, 1, t0)
    p.i("v_lshlrev_b32", t0, 5, t0)
    p.i("v_add_u32", vA[0][0], t1, t0)
    p.i("v_sub_u32", vA[0][1], t1, t0)
    p.i("v_add_u32", vA[1][0], 3 * STG, vA[0][0])
    p.i("v_add_u32", vA[1][1], 3 * STG, vA[0][1])
    p.i("v_lshlrev_b32", vP, 4, vl)


def start(p):
    srd(p, sW, pW2, 1728 * 1280)
    srd_off(p, sB, pWS, H_OFF, H_SIZE)
    p.i("s_mul_i32", sWo, sROLE, 7 * 81920)
    p.i("s_mul_i32", sBo, sROLE, 14 * 131072)
    p.i("s_mul_i32", sT[4], sROLE, 1024 * 1280)
    p.i("s_mul_i32", sM0, sWAVE, 5120)
    for st in range(4):
        for sc, me in prefetch_ops(st):
            if sc is not None:
                p.add(sc)
                p.i("s_nop", 0)
            p.add(me)
        p.i("s_add_u32", sWo, sWo, 81920)
        p.i("s_add_u32", sBo, sBo, 262144)
    srd_off(p, sP, pWS, PS_OFF, 2 * 0xC00000)
    p.i("s_lshr_b32", sT[0], s(2), 2)
    p.i("s_lshl_b32", sT[0], sT[0], 2)
    p.i("s_add_u32", sT[0], sT[0], sWAVE)
    p.i("s_mul_i32", sT[0], sT[0], 40)
    p.i("s_add_u32", sT[0], sT[0], sROLE)
    p.i("s_lshl_b32", sPO, sT[0], 10)
    p.i("s_add_u32", sPO, sPO, PM_OFF - PS_OFF)
    p.i("s_lshl_b32", sT[0], sROLE, 1)
    p.i("s_lshl_b32", sMASK[0], 0x03030303, sT[0])
    p.i("s_mov_b32", sMASK[1], 0)


def zero_acc(b):
    for r in range(ACC0, ACC0 + 80):
        b.i("v_mov_b32", v(r), 0)


def final_addr(e):
    vl, t0, t1 = v(240), v(241), v(242)
    e.i("v_and_b32", vl, 63, v(0))
    srd(e, sX, pX, 2048 * 1280)
    srd(e, sOUT, pOUT, 2048 * 1280)
    srd(e, sMISC, pB2, 1280)
    e.i("s_lshl_b32", sT[0], sRT0, 4)
    e.i("s_lshl_b32", sT[1], sROLE, 5)
    e.i("s_add_u32", sT[0], sT[0], sT[1])
    e.i("v_and_b32", t0, 15, vl)
    e.i("v_add_u32", t0, sT[0], t0)
    e.i("v_mul_u32_u24", t0, 1280, t0)
    e.i("v_lshrrev_b32", t1, 4, vl)
    e.i("v_lshlrev_b32", t1, 4, t1)
    e.i("s_mul_i32", sT[1], sNT, 320)
    e.i("v_add_u32", t1, sT[1], t1)
    e.i("s_and_b32", sT[2], s(2), 0xFC)
    e.i("s_add_u32", sT[2], sT[2], sROLE)
    e.i("s_mul_i32", sT[2], sT[2], 40 * 1024)
    for j in range(3):
        e.i("s_add_u32", sT[0], sWAVE, 4 * j)
        e.i("s_cmp_ge_u32", sT[0], 5)
        e.i("s_cselect_b32", sT[3], 16 * 1280, 0)
        e.i("s_cselect_b32", sT[4], 5, 0)
        e.i("s_sub_u32", sT[4], sT[0], sT[4])
        e.i("s_lshl_b32", sT[4], sT[4], 6)
        e.i("s_cmp_ge_u32", sT[0], 10)
        e.i("s_cselect_b32", sT[5], OOB, 0)
        e.i("s_add_u32", sT[4], sT[4], sT[5])
        e.i("v_add_u32", CO[j], sT[4], t1)
        e.i("v_add_u32", XO[j], sT[3], t0)
        e.i("v_add_u32", XO[j], XO[j], CO[j])
        e.i("s_lshl_b32", sT[0], sT[0], 12)
        e.i("s_add_u32", sT[0], sT[0], sT[2])
        e.i("s_add_u32", sT[0], sT[0], sT[5])
        e.i("v_lshlrev_b32", PO[j], 4, vl)
        e.i("v_add_u32", PO[j], sT[0], PO[j])


def tile_mask(b):
    b.i("s_and_b32", sT[0], s(2), 28)
    b.i("s_lshl_b32", sMASK[0], 15, sT[0])
    b.i("s_mov_b32", sMASK[1], 0)


def sum4(e, j, dst, tmp):
    for h in range(4):
        lo16(e, dst[2 * h], PV[j][0][h])
        hi16(e, dst[2 * h + 1], PV[j][0][h])
    for k in range(1, 4):
        for h in range(4):
            lo16(e, tmp[2 * h], PV[j][k][h])
            hi16(e, tmp[2 * h + 1], PV[j][k][h])
        for h in range(4):
            e.i("v_pk_add_f32", dst.sub(2 * h, 2), dst.sub(2 * h, 2), tmp.sub(2 * h, 2))


def build(pre_ops_after, on_pre=None):
    n_pre = sum(1 for x in pre_ops_after.ins if x.cls in ("vmem", "dma"))
    seq = []
    for z in range(4):
        seq += [("pf", z)] * 9
    seq += [("o", 0)] * n_pre
    waits = {}
    w_pre = len(seq) - max(i for i, t in enumerate(seq) if t == ("pf", 0)) - 1
    side_w = {}
    for z in range(NZ):
        if z == 4:
            seq.append(("poll3", 0))
        if z == 5:
            side_w[5] = len(seq) - seq.index(("poll3", 0)) - 1
            seq += [("pf", 7)] * 4 + [("pf", 8)] * 4
        if z == 18:
            seq.append(("poll4", 0))
        if z == 19:
            side_w[19] = len(seq) - seq.index(("poll4", 0)) - 1
            seq += [("fin", 0)] * 18
        k = 0
        evs = sorted([(g, "pf", i) for i, g in enumerate(GAPS)] + ([(34, "flag", 0)] if z % R == 3 else []) +
                     [(BARG - 0.5, "wait", 0)])
        for g, kind, i in evs:
            if kind == "pf":
                dummy = (i >= 5 and z in (3, 4))
                seq.append(("dummy", 0) if dummy else ("pf", z + 4))
            elif kind == "flag":
                seq.append(("flag", z))
            else:
                need = [i2 for i2, t in enumerate(seq) if t == ("pf", z + 1)]
                waits[z] = len(seq) - max(need) - 1 if need and z + 1 < NZ else 24
                if z == 3:
                    lasto = max(i2 for i2, t in enumerate(seq) if t[0] == "o") if n_pre else -1
                    waits[z] = min(waits[z], len(seq) - lasto - 1)
                if z == 15:
                    lastm = max(i2 for i2, t in enumerate(seq) if t[0] == "mst")
                    waits[z] = min(waits[z], len(seq) - lastm - 1)
        if z == NM_STEPS - 1:
            seq += [("mst", 0)] * 10
    waits = {z: min(w, 63) for z, w in waits.items()}
    tabs = {u: {z: waits[z] for z in range(NZ) if z % R == u} for u in range(R)}
    steps = [step(u, tabs[u]) for u in range(R)]

    b = Block()
    tr = []
    p = Block()
    p.add(pre_ops_after)
    zero_acc(p)
    p.i("s_mov_b32", sZ, 0)
    p.wait(vm=w_pre)
    p.i("s_barrier")
    for n in range(LOOK):
        for x in range(2):
            p.add(rd(0, n, slot(0, n), x))
    p.wait(lgkm=2 * (LOOK - 1))
    stamp(p, "p3first")
    b.add(p)
    tr += p.ins

    side = {}
    x = Block()
    poll_load(x, sMASK)
    side[4] = (x, x.ins)
    x = Block()
    x.wait(vm=side_w[5])
    poll_test(x, sMASK, 3)
    x.i("s_cbranch_scc1", "P3_opoll_ok")
    sl = Block()
    poll_loop(sl, "P3_opoll", sMASK, 3)
    y = Block()
    srd_off(y, sB, pWS, O_OFF, O_SIZE)
    y.i("s_mul_i32", sBo, sROLE, 32 * 131072)
    for st in (7 % R, 8 % R):
        for ks in range(2):
            for qt in range(2):
                y.add(b_load(st, ks, qt))
        y.i("s_add_u32", sBo, sBo, 262144)
    tile_mask(y)
    full = Block()
    full.add(x)
    full.add(sl)
    full.add(y)
    side[5] = (full, x.ins + y.ins)
    x = Block()
    poll_load(x, sMASK)
    side[18] = (x, x.ins)
    x = Block()
    x.wait(vm=side_w[19])
    poll_test(x, sMASK, 4)
    x.i("s_cbranch_scc1", "P3_mpoll_ok")
    sl = Block()
    poll_loop(sl, "P3_mpoll", sMASK, 4)
    y = Block()
    final_addr(y)
    y.i("s_mov_b32", sT[4], PM_OFF - PS_OFF)
    for j in range(3):
        for k in range(4):
            y.i("buffer_load_dwordx4", PV[j][k], PO[j], sP, sT[4], mods=f"offen offset:{1024 * k} sc1")
        y.i("buffer_load_dwordx4", XV[j], XO[j], sX, 0, mods="offen")
        y.i("buffer_load_dwordx4", BV[j], CO[j], sMISC, 0, mods="offen")
    full = Block()
    full.add(x)
    full.add(sl)
    full.add(y)
    side[19] = (full, x.ins + y.ins)

    bound = Block()
    bound.nop(8)
    store_partial(bound, sPO, zero=True)
    bound.i("s_sub_u32", sPO, sPO, PM_OFF - PS_OFF)
    bound.nop(2)
    stamp(bound, "mE")

    b.label("P3_loop")
    for u in range(R):
        for z in side:
            if z % R == u:
                b.i("s_cmp_eq_u32", sZ, z)
                b.i("s_cbranch_scc1", f"P3_side{z}")
        b.label(f"P3_u{u}")
        b.add(steps[u])
        if u == (NM_STEPS - 1) % R:
            b.i("s_cmp_eq_u32", sZ, NM_STEPS)
            b.i("s_cbranch_scc1", "P3_bound")
        if u == (NZ - 1) % R:
            b.i("s_cmp_eq_u32", sZ, NZ)
            b.i("s_cbranch_scc1", "P3_fin")
        if u < R - 1:
            b.label(f"P3_t{u + 1}")
    b.i("s_branch", "P3_loop")
    b.label("P3_bound")
    b.add(bound)
    b.i("s_branch", f"P3_t{NM_STEPS % R}")
    for z, (full, _) in side.items():
        b.label(f"P3_side{z}")
        b.add(full)
        b.i("s_branch", f"P3_u{z % R}")
    for z in range(NZ):
        if z in side:
            tr += side[z][1]
        wz = waits[z]
        for ins in steps[z % R].ins:
            nt_ = getattr(ins, "note", "")
            if nt_.startswith("vmw") and int(nt_[3:]) < wz:
                continue
            tr.append(ins)
        if z == NM_STEPS - 1:
            tr += bound.ins

    b.label("P3_fin")
    e = Block()
    stamp(e, "sE")
    e.nop(8)
    store_partial(e, sPO)
    e.wait(vm=10)
    e.i("s_mov_b32", sT[0], f2u(-1.4426950408889634))
    tmp, EE = v(240, 8), v(248, 8)
    for j in range(3):
        G = GV[j]
        sum4(e, j, G, tmp)
        for h in range(4):
            lo16(e, tmp[2 * h], BV[j][h])
            hi16(e, tmp[2 * h + 1], BV[j][h])
        for h in range(4):
            e.i("v_pk_add_f32", G.sub(2 * h, 2), G.sub(2 * h, 2), tmp.sub(2 * h, 2))
        for q in range(8):
            e.i("v_mul_f32", EE[q], sT[0], G[q])
        for q in range(8):
            e.i("v_exp_f32", EE[q], EE[q])
        for h in range(4):
            e.i("v_pk_add_f32", EE.sub(2 * h, 2), EE.sub(2 * h, 2), 1.0)
        for q in range(8):
            e.i("v_rcp_f32", EE[q], EE[q])
        e.nop(1)
        for h in range(4):
            e.i("v_pk_mul_f32", G.sub(2 * h, 2), G.sub(2 * h, 2), EE.sub(2 * h, 2))
    set_phase(e, 5)
    e.wait(vm=0)
    e.i("s_barrier")
    e.add(flag_store())
    stamp(e, "gE")
    poll_loop(e, "P3_spoll", sMASK, 5)
    stamp(e, "polled")
    for j in range(3):
        for k in range(4):
            e.i("buffer_load_dwordx4", PV[j][k], PO[j], sP, 0, mods=f"offen offset:{1024 * k} sc1")
    SS = v(96, 8)
    for j in range(3):
        e.wait(vm=4 * (2 - j) + j)
        sum4(e, j, SS, tmp)
        for h in range(4):
            lo16(e, tmp[2 * h], XV[j][h])
            hi16(e, tmp[2 * h + 1], XV[j][h])
        for h in range(4):
            e.i("v_pk_fma_f32", SS.sub(2 * h, 2), SS.sub(2 * h, 2), GV[j].sub(2 * h, 2), tmp.sub(2 * h, 2))
        for h in range(4):
            e.i("v_cvt_pk_bf16_f32", XV[j][h], SS[2 * h], SS[2 * h + 1])
        e.i("buffer_store_dwordx4", XV[j], XO[j], sOUT, 0, mods="offen")
    stamp(e, "end")
    b.add(e)
    tr += [x for x in e.ins]
    return b, tr, dict(waits=waits, side=side_w, pre=w_pre)
```

```python
import sys
from layout import *
import layout as LY
from common import assemble_file, NAME
import k1 as K
import p3 as P3
import attn16 as A
from attn16 import (MF, L, NM, S, P, Q, O, KF, VF, sKSRD, sVSRD, sTOFF, sMK, sMV, dma_k, dma_v, k_read)
from k1 import (sWQ, sW1, sXN, sO, sH, sMISC, sWQo, sW1o, sXNo, sMWQ, sMW1, sCNT, sMKp, sMVp, sSC, sT, pA, pB, pC, pD,
                pE, pF, sC, WRING, vWQD, vW1D, vXN, vWQA, vW1A, vDUM, HACC, BBUF, a_read, wq_dma, w1_dma,
                qk_raw, tile_max, xlane_op4, THR)

OPT = dict()
pXin = s(76, 2)
pDBG = s(62, 2)
sMASK = P3.sMASK


def xn_load(buf, qt):
    return I("buffer_load_dwordx4", BBUF[buf][qt], vXN, sXN, sXNo, mods=f"offen offset:{1024 * qt} sc1")


K.xn_load = xn_load


def layernorm(b, vst, vrow, vj):
    X, PK = v(32, 40), v(72, 20)
    acc, mean, tmp, mb, den, d, var = v(92, 2), v(94), v(95), v(96), v(98), v(100, 2), v(108)
    cM, cE = sC[0], sC[1]
    b.i("s_mov_b32", cM, f2u(1.0 / 640.0))
    b.i("s_mov_b32", cE, f2u(1e-5))
    for t in range(1, 5):
        b.i("s_mov_b32", sC[1 + t], t * 524288)

    def denom(dst):
        bf16_round(b, dst, tmp)
        b.i("v_add_f32", dst, cE, dst)
        bf16_round(b, dst, tmp)
        b.i("v_sqrt_f32", dst, dst)
        b.nop(1)
        bf16_round(b, dst, tmp)

    b.wait(vm=9)
    stamp(b, "xin")
    for r in range(20):
        lo16(b, X[2 * r], PK[r])
        hi16(b, X[2 * r + 1], PK[r])
    acc2 = v(104, 2)
    b.i("v_pk_add_f32", acc, X.sub(0, 2), X.sub(4, 2))
    b.i("v_pk_add_f32", acc2, X.sub(2, 2), X.sub(6, 2))
    for r in range(4, 20):
        t = acc2 if r & 1 else acc
        b.i("v_pk_add_f32", t, t, X.sub(2 * r, 2))
    b.i("v_pk_add_f32", acc, acc, acc2)
    b.i("v_add_f32", mean, acc[0], acc[1])
    dpp_row_sum(b, mean)
    b.i("v_mul_f32", mean, cM, mean)
    mm = Reg("v", mean.idx, 2)
    d2 = v(102, 2) if False else v(110, 2)
    for r in range(20):
        dd_, t = (d2, acc2) if r & 1 else (d, acc)
        b.i("v_pk_add_f32", dd_, X.sub(2 * r, 2), mm, mods="op_sel_hi:[1,0] neg_lo:[0,1] neg_hi:[0,1]")
        if r < 2:
            b.i("v_pk_mul_f32", t, dd_, dd_)
        else:
            b.i("v_pk_fma_f32", t, dd_, dd_, t)
    b.i("v_pk_add_f32", acc, acc, acc2)
    b.i("v_add_f32", den, acc[0], acc[1])
    dpp_row_sum(b, den)
    b.i("v_mul_f32", den, cM, den)
    b.i("v_mov_b32", var, den)
    b.i("v_mov_b32", mb, mean)
    bf16_round(b, mb, tmp)
    denom(den)
    b.i("v_rcp_f32", den, den)
    mm = Reg("v", mb.idx, 2)
    dd = Reg("v", den.idx, 2)
    tm2 = v(109)
    for r in range(0, 20, 2):
        prs = ((d, tmp, r), (d2, tm2, r + 1))
        for dx, tx, rr in prs:
            b.i("v_pk_add_f32", dx, X.sub(2 * rr, 2), mm, mods="op_sel_hi:[1,0] neg_lo:[0,1] neg_hi:[0,1]")
        for dx, tx, rr in prs:
            b.i("v_cvt_pk_bf16_f32", tx, dx[0], dx[1])
        for dx, tx, rr in prs:
            lo16(b, dx[0], tx)
            hi16(b, dx[1], tx)
        for dx, tx, rr in prs:
            b.i("v_pk_mul_f32", dx, dx, dd, mods="op_sel_hi:[1,0]")
        for dx, tx, rr in prs:
            b.i("v_cvt_pk_bf16_f32", PK[rr], dx[0], dx[1])
        if (r + 2) % 4 == 0:
            t = (r + 2) // 4 - 1
            b.i("buffer_store_dwordx4", PK.sub(4 * t, 4), vst, sXN, sC[1 + t] if t else 0, mods="offen sc1")
    b.i("v_mul_f32", var, var, den)
    b.i("v_mul_f32", var, var, den)
    denom(var)
    b.i("v_rcp_f32", var, var)
    srd_off(b, sMISC, pWS, R2_OFF, 8192)
    b.i("v_cmp_eq_u32", "vcc", 0, vj)
    b.i("v_lshlrev_b32", vrow, 2, vrow)
    b.i("v_mov_b32", tmp, OOB)
    b.i("v_cndmask_b32", vrow, tmp, vrow, "vcc")
    b.i("buffer_store_dword", var, vrow, sMISC, 0, mods="offen sc1")


def setup(b):
    ld_arg(b, pXin, "x")
    ld_arg(b, pWS, "ws")
    ld_arg(b, pDBG, "dbg")
    ld_arg(b, pC, "wq")
    ld_arg(b, pD, "w1")
    ld_arg(b, pA, "k")
    ld_arg(b, pB, "v")
    ld_arg(b, pE, "b1")
    b.i("s_memrealtime", s(100, 2))
    b.i("s_cmp_ge_u32", s(2), 256)
    b.i("s_cbranch_scc1", "FZ_end")
    stamp(b, "start")
    b.i("s_and_b32", sT[0], s(2), 7)
    b.i("s_lshl_b32", sT[0], sT[0], 2)
    b.i("s_bfe_u32", sT[1], s(2), 0x20003)
    b.i("s_add_u32", sHEAD, sT[0], sT[1])
    b.i("s_lshr_b32", sQB, s(2), 5)
    vl, vw, t0, t1, t2, t3 = v(200), v(201), v(202), v(203), v(204), v(205)
    b.i("v_and_b32", vl, 63, v(0))
    b.i("v_lshrrev_b32", vw, 6, v(0))
    vld, vst, vrow, vj = v(102), v(103), v(106), v(107)
    b.i("v_lshrrev_b32", vrow, 4, v(0))
    b.i("v_readfirstlane_b32", sWAVE, vw)
    b.i("s_lshl_b32", s(3), s(2), 3)
    b.i("v_add_u32", vrow, s(3), vrow)
    b.i("v_and_b32", vj, 15, v(0))
    b.i("v_mul_u32_u24", vld, 1280, vrow)
    b.i("v_lshl_add_u32", vld, vj, 4, vld)
    b.i("s_lshl_b32", sT[0], sQB, 5)
    b.i("s_and_b32", sT[1], s(2), 31)
    b.i("s_cmp_eq_u32", sT[1], 0)
    b.i("s_cselect_b32", sT[1], sT[0], OOB)
    b.i("v_mov_b32", t0, OOB)
    b.i("v_mov_b32", t1, sT[1])
    b.i("v_cmp_eq_u32", "vcc", 0, v(0))
    b.wait(lgkm=0)
    b.nop(2)
    b.i("v_cndmask_b32", t0, t0, t1, "vcc")
    b.i("s_and_b32", s(100), s(100), 0x7FFFFFF8)
    b.i("s_or_b32", s(100), s(100), 0x80000000)
    srd(b, sMISC, pDBG, 256)
    b.i("v_mov_b32", t1, s(100))
    b.i("buffer_store_dword", t1, t0, sMISC, 0, mods="offen sc1")
    PK = v(72, 20)
    srd(b, sO, pXin, 2048 * 1280)
    b.i("s_cmp_ge_u32", sWAVE, 2)
    b.i("s_cbranch_scc1", "FZ_nox")
    for t in range(5):
        b.i("buffer_load_dwordx4", PK.sub(4 * t, 4), vld, sO, 0, mods=f"offen offset:{256 * t}")
    b.label("FZ_nox")
    b.i("v_lshrrev_b32", t0, 4, vl)
    b.i("v_and_b32", t1, 15, vl)
    b.i("v_lshlrev_b32", t2, 2, t0)
    b.i("v_xor_b32", t2, t1, t2)
    b.i("v_lshlrev_b32", t2, 4, t2)
    b.i("v_lshl_add_u32", t3, vw, 3, t0)
    b.i("v_lshl_add_u32", t2, t3, 13, t2)
    b.i("s_lshl_b32", sT[0], sHEAD, 8)
    b.i("v_add_u32", vWQD[0], sT[0], t2)
    b.i("v_add_u32", vWQD[1], 4 * 8192 - 1024, vWQD[0])
    b.i("v_lshrrev_b32", t2, 3, vl)
    b.i("v_lshl_add_u32", t2, vw, 3, t2)
    b.i("v_mul_u32_u24", vW1D, 3456, t2)
    b.i("v_and_b32", t2, 1, t0)
    b.i("v_and_b32", t3, 1, vw)
    b.i("v_lshl_add_u32", t2, t3, 1, t2)
    b.i("v_lshlrev_b32", t2, 1, t2)
    b.i("v_and_b32", t3, 7, vl)
    b.i("v_xor_b32", t2, t2, t3)
    b.i("v_lshl_add_u32", vW1D, t2, 4, vW1D)
    b.i("s_lshl_b32", sT[0], sHEAD, 7)
    b.i("v_add_u32", vW1D, sT[0], vW1D)
    srd(b, sWQ, pC, 640 * 8192)
    srd(b, sW1, pD, 640 * 3456)
    b.i("s_cmp_lt_u32", sHEAD, 27)
    b.i("s_cselect_b32", sW1[2], 640 * 3456, 0)
    b.i("s_lshl_b32", sT[0], sWAVE, 11)
    b.i("s_add_u32", sMWQ, sT[0], WRING)
    b.i("s_mov_b32", sMK, sT[0])
    b.i("s_add_u32", sMV, sT[0], 65536)
    b.i("s_lshl_b32", sT[0], sWAVE, 10)
    b.i("s_add_u32", sMW1, sT[0], WRING + 8192)
    b.i("s_mov_b32", sWQo, 0)
    b.i("s_mov_b32", sW1o, 0)
    b.i("s_mov_b32", sXNo, 0)

    def wfill(st):
        b.i("s_add_u32", "m0", sMWQ, st * 12288)
        b.i("s_nop", 0)
        b.add(wq_dma(0))
        b.add(wq_dma(1))
        b.i("s_add_u32", "m0", sMW1, st * 12288)
        b.i("s_add_u32", sWQo, sWQo, 262144)
        b.add(w1_dma())
        b.i("s_add_u32", sW1o, sW1o, 110592)
    for st in range(3):
        wfill(st)
    b.i("s_lshl_b32", sT[0], sQB, 4)
    b.i("s_lshl_b32", sT[1], sWAVE, 2)
    b.i("s_add_u32", sT[2], sT[0], sT[1])
    b.i("s_lshl_b32", sT[0], sT[2], 10)
    b.i("v_lshlrev_b32", vXN, 4, vl)
    b.i("v_add_u32", vXN, sT[0], vXN)
    srd_off(b, sXN, pWS, XN_OFF, XN_SIZE)
    srd_off(b, sFLG, pWS, FLAG_OFF, FLAG_SIZE)
    b.i("v_lshrrev_b32", t0, 2, vj)
    b.i("v_lshlrev_b32", vst, 17, t0)
    b.i("v_lshrrev_b32", t0, 4, vrow)
    b.i("v_lshl_add_u32", vst, t0, 10, vst)
    b.i("v_and_b32", t0, 3, vj)
    b.i("v_lshl_add_u32", vst, t0, 8, vst)
    b.i("v_and_b32", t0, 15, vrow)
    b.i("v_lshl_add_u32", vst, t0, 4, vst)

    def rest():
        b.i("s_lshl_b32", sT[0], sHEAD, 19)
        srd_off(b, sKSRD, pA, sT[0], 524288)
        srd_off(b, sVSRD, pB, sT[0], 524288)
        A.addr_setup(b, vl, vw, [t0, t1, t2, t3])
        b.i("v_lshrrev_b32", t0, 4, vl)
        b.i("v_bfe_u32", t1, vl, 2, 2)
        b.i("v_and_b32", t2, 3, vl)
        b.i("v_lshl_add_u32", t3, t0, 3, t1)
        b.i("v_lshlrev_b32", vWQA[0], 8, t3)
        b.i("v_lshl_add_u32", vWQA[0], t1, 6, vWQA[0])
        b.i("v_lshl_add_u32", vWQA[0], t2, 4, vWQA[0])
        b.i("v_add_u32", vWQA[0], WRING, vWQA[0])
        for ks in range(1, 4):
            b.i("v_xor_b32", vWQA[ks], 64 * ks, vWQA[0])
        b.i("v_lshlrev_b32", vW1A[0], 7, t3)
        b.i("v_lshl_add_u32", vW1A[0], t2, 3, vW1A[0])
        b.i("v_lshrrev_b32", t1, 1, t1)
        b.i("v_and_b32", t0, 1, t0)
        b.i("v_lshl_add_u32", t1, t0, 1, t1)
        b.i("v_lshl_add_u32", vW1A[0], t1, 5, vW1A[0])
        b.i("v_add_u32", vW1A[0], WRING + 8192, vW1A[0])
        for ft in range(1, 4):
            b.i("v_xor_b32", vW1A[ft], 32 * ft, vW1A[0])
        b.i("s_mov_b32", sMKp, sMK)
        b.i("s_mov_b32", sMVp, sMV)
        b.i("s_mov_b32", sTOFF, 0)
        b.i("s_mov_b32", sCNT, 5)
        b.i("s_mov_b32", sSC[0], f2u(128 ** -0.5 * 1.4426950408889634))
        b.i("s_mov_b32", sSC[1], f2u(128 ** -0.5 * 1.4426950408889634))
    rest()
    b.i("s_cmp_ge_u32", sWAVE, 2)
    b.i("s_cbranch_scc1", "FZ_noln")
    layernorm(b, vst, vrow, vj)
    b.label("FZ_noln")
    stamp(b, "lnE")
    FR.update(o=v(34), v=v(32), p=v(35), t=v(33))
    srd(b, sMISC, pDBG, 256)
    b.i("s_lshl_b32", sT[0], sQB, 5)
    b.i("v_mov_b32", v(36), sT[0])
    b.i("buffer_load_dword", v(37), v(36), sMISC, 0, mods="offen sc1")
    flag_addr(b, v(38))
    for r in range(48, 240):
        b.i("v_mov_b32", v(r), 0)
    for r in range(128):
        b.i("v_accvgpr_write_b32", a(r), 0)
    b.i("s_mov_b32", s(79), 1 << 16)
    b.label("FZ_nonce")
    b.wait(vm=0)
    b.i("v_readfirstlane_b32", sNONCE, v(37))
    b.i("s_sub_u32", s(79), s(79), 1)
    b.i("s_cmp_eq_u32", s(79), 0)
    b.i("s_cbranch_scc1", "FZ_nonce_ok")
    b.i("s_cmp_lg_u32", sNONCE, 0)
    b.i("s_cbranch_scc1", "FZ_nonce_ok")
    b.i("buffer_load_dword", v(37), v(36), sMISC, 0, mods="offen sc1")
    b.i("s_branch", "FZ_nonce")
    b.label("FZ_nonce_ok")
    set_phase(b, 1)
    b.i("s_barrier")
    b.add(flag_store())
    b.i("s_mov_b32", s(100), -1)
    b.i("s_mov_b32", s(101), 0)
    b.i("s_mov_b64", pF, s(100, 2))
    b.i("s_cmp_lg_u32", sWAVE, 0)
    b.i("s_cbranch_scc1", "FZ_f1_ok")
    poll_loop(b, "FZ_f1", pF, 1)
    b.i("s_barrier")
    stamp(b, "f1")
    for st in range(3):
        if st == 2:
            b.i("buffer_load_dword", vDUM, vXN, sXN, 0, mods="offen")
            wfill(3)
        for qt in range(4):
            b.add(xn_load(st, qt))
        b.i("s_add_u32", sXNo, sXNo, 131072)
    FR.update(o=vFO, v=vFV, p=vFP, t=vFT)
    for n in range(24):
        b.add(a_read(0, 0, n))
    b.wait(vm=12, lgkm=0)


R2V = [v(240 + i) for i in range(4)]
B1P = v(244, 8)


def q_epilogue(b):
    t0, t1 = v(21), v(22)
    srd_off(b, sMISC, pWS, R2_OFF, 8192)
    b.i("s_lshl_b32", sT[0], sT[2], 6)
    b.i("v_and_b32", t0, 15, v(0))
    b.i("v_lshl_add_u32", t0, t0, 2, sT[0])
    for qt in range(4):
        b.i("buffer_load_dword", R2V[qt], t0, sMISC, 0, mods=f"offen offset:{64 * qt} sc1")
    srd(b, sW1, pE, 1728 * 2)
    b.i("s_lshl_b32", sT[0], sHEAD, 7)
    b.i("v_bfe_u32", t1, v(0), 4, 2)
    b.i("v_lshl_add_u32", t1, t1, 3, sT[0])
    for ft in range(4):
        b.i("buffer_load_dwordx2", B1P.sub(2 * ft, 2), t1, sW1, 0, mods=f"offen offset:{32 * ft}")
    for j in (5, 6):
        b.i("s_add_u32", "m0", sMK, j * 8192)
        b.i("s_nop", 0)
        b.add(dma_k(0))
        b.add(dma_k(1))
        b.i("s_add_u32", "m0", sMV, j * 8192)
        b.i("s_nop", 0)
        b.add(dma_v(0))
        b.add(dma_v(1))
        b.i("s_add_u32", sTOFF, sTOFF, 8192)
    for n in range(8):
        b.add(k_read(0, n))
    for j in range(63, -1, -1):
        src = v(48 + 2 * j, 2)
        b.i("v_pk_mul_f32", src, src, sSC)
        if j < 63:
            pj = v(48 + 2 * (j + 1), 2)
            b.i("v_cvt_pk_bf16_f32", v(112 + j + 1), pj[0], pj[1])
    b.i("v_cvt_pk_bf16_f32", v(112), v(48), v(49))
    b.wait(lgkm=0)
    b.nop(2)
    qk_raw(b)
    M = [v(92 + i) for i in range(4)]
    T = [v(88 + i) for i in range(4)]
    b.nop(8)
    tile_max(b, M)
    xlane_op4(b, "v_max_f32", M, T)
    for qt in range(4):
        for r in range(4):
            b.i("v_mul_f32", NM[qt][r], -1.0, M[qt])
        b.i("v_mov_b32", L[qt], 0)


def h_epilogue(b):
    B1F = v(40, 16)
    srd_off(b, sH, pWS, H_OFF, H_SIZE)
    b.i("s_cmp_lt_u32", sHEAD, 27)
    b.i("s_cselect_b32", sH[2], H_SIZE, 0)
    b.i("s_lshl_b32", sT[0], sHEAD, 18)
    b.i("s_lshl_b32", sT[1], sT[2], 10)
    b.i("s_add_u32", sT[0], sT[0], sT[1])
    vst = v(22)
    b.i("v_and_b32", vst, 63, v(0))
    b.i("v_lshlrev_b32", vst, 4, vst)
    b.i("v_add_u32", vst, sT[0], vst)
    c1 = -2.0 * 1.4426950408889634 * 0.7978845608028654
    b.i("s_mov_b32", sC[1], 131072)
    b.i("s_mov_b32", sC[4], f2u(c1))
    b.i("s_mov_b32", sC[2], f2u(c1 * 0.044715))
    b.i("s_mov_b32", sC[3], f2u(c1 * 0.044715))
    pc3 = Reg("s", sC[2].idx, 2)
    b.wait(vm=8)
    for ft in range(4):
        lo16(b, B1F[4 * ft], B1P[2 * ft])
        hi16(b, B1F[4 * ft + 1], B1P[2 * ft])
        lo16(b, B1F[4 * ft + 2], B1P[2 * ft + 1])
        hi16(b, B1F[4 * ft + 3], B1P[2 * ft + 1])
    RV = [v(88 + 2 * i, 2) for i in range(4)]
    for qt in range(4):
        b.i("v_mov_b32", RV[qt][0], R2V[qt])
    C1 = v(104, 2)
    b.i("v_mov_b32", C1[0], sC[4])
    b.i("v_mov_b32", C1[1], sC[4])
    n = 0
    for c in range(2):
        for qt in range(4):
            U = v(56, 8)
            Wt = v(64, 8)
            pk = v(72 + 4 * (n & 3), 4)
            n += 1
            for h in range(4):
                ft, r = 2 * c + (h >> 1), 2 * (h & 1)
                b.i("v_pk_fma_f32", U.sub(2 * h, 2), HACC(qt, ft).sub(r, 2), RV[qt], B1F.sub(4 * ft + r, 2),
                    mods="op_sel_hi:[1,0,1]")
            for h in range(4):
                b.i("v_pk_mul_f32", Wt.sub(2 * h, 2), U.sub(2 * h, 2), U.sub(2 * h, 2))
            for h in range(4):
                b.i("v_pk_fma_f32", Wt.sub(2 * h, 2), Wt.sub(2 * h, 2), pc3, C1)
            for h in range(4):
                b.i("v_pk_mul_f32", Wt.sub(2 * h, 2), Wt.sub(2 * h, 2), U.sub(2 * h, 2))
            for e in range(8):
                b.i("v_exp_f32", Wt[e], Wt[e])
            for h in range(4):
                b.i("v_pk_add_f32", Wt.sub(2 * h, 2), Wt.sub(2 * h, 2), 1.0)
            for e in range(8):
                b.i("v_rcp_f32", Wt[e], Wt[e])
            for h in range(4):
                b.i("v_pk_mul_f32", U.sub(2 * h, 2), U.sub(2 * h, 2), Wt.sub(2 * h, 2))
            for h in range(4):
                b.i("v_cvt_pk_bf16_f32", pk[h], U[2 * h], U[2 * h + 1])
            b.i("buffer_store_dwordx4", pk, vst, sH, sC[1] if c else 0, mods=f"offen offset:{1024 * qt} sc1")


def stamps_out(b):
    b.wait(vm=0, lgkm=0)
    srd_off(b, sMISC, pWS, 0x4000000, 1 << 20)
    b.i("s_lshl_b32", sT[0], s(2), 2)
    b.i("s_add_u32", sT[0], sT[0], sWAVE)
    b.i("s_lshl_b32", sT[0], sT[0], 6)
    b.i("v_mov_b32", v(1), sT[0])
    for k in range(len(STAMPS)):
        b.i("v_mov_b32", v(2), s(80 + 2 * k))
        b.i("buffer_store_dword", v(2), v(1), sMISC, 0, mods=f"offen offset:{4 * k}")
        b.nop(1)


def build(names=(), thr=THR):
    STAMPS.clear()
    for i, n in enumerate(names):
        STAMPS[n] = i
    b = Block()
    tr = []
    pre = Block()
    setup(pre)
    b.add(pre)
    tr += pre.ins
    stamp(b, "pro0")
    b.label("K1_pro")
    steps = Block()
    for u in range(4):
        steps.add(K.pro_step(u))
    b.add(steps)
    b.i("s_cbranch_scc1", "K1_pro")
    tr += steps.ins * 5
    stamp(b, "proE")
    qe = Block()
    q_epilogue(qe)
    stamp(qe, "qE")
    h_epilogue(qe)
    P3.addr(qe)
    flag_addr(qe, v(240))
    set_phase(qe, 2)
    qe.i("s_mov_b32", sMASK[0], -1)
    qe.i("s_mov_b32", sMASK[1], 0)
    qe.nop(2)
    stamp(qe, "hE")
    b.add(qe)
    tr += qe.ins
    it0 = A.iteration(0, g2=False, sm1_prev=False)
    b.add(it0)
    tr += it0.ins
    b.i("s_mov_b32", sCNT, 8)
    b.i("s_branch", "K1_u1")
    b.raw(".p2align 6")
    b.label("K1_loop")
    its = [A.iteration(u) for u in range(8)]
    k = next(i for i, x in enumerate(its[5].ins) if x.op.startswith("buffer_load"))
    its[5].ins.insert(k + 1, flag_store())
    b.add(its[0])
    b.label("K1_u1")
    for u in range(1, 8):
        b.add(its[u])
        tr += its[u].ins
    for u in range(8):
        tr += its[u].ins
    b.i("s_sub_u32", sCNT, sCNT, 1)
    b.i("s_cmp_lg_u32", sCNT, 0)
    b.i("s_cbranch_scc1", "K1_loop")
    e = Block()
    stamp(e, "loopE")
    P3.args(e)
    poll_load(e, sMASK)
    K.tail(e)
    T4 = [v(88 + i) for i in range(4)]
    xlane_op4(e, "v_add_f32", L, T4)
    e.i("s_mov_b32", sT[0], f2u(thr))
    cc = [s(56 + 2 * i, 2) for i in range(4)]
    for i in range(4):
        e.i("v_cmp_nle_f32", cc[i], L[i], sT[0])
    e.nop(2)
    e.i("s_or_b64", cc[0], cc[0], cc[1])
    e.i("s_or_b64", cc[2], cc[2], cc[3])
    e.i("s_or_b64", cc[0], cc[0], cc[2])
    e.i("s_cmp_lg_u64", cc[0], 0)
    e.i("s_cselect_b32", sT[0], 1, 0)
    e.i("s_lshl_b32", sT[1], sWAVE, 2)
    e.i("v_mov_b32", T4[0], sT[0])
    e.i("v_mov_b32", T4[1], sT[1])
    e.i("v_add_u32", T4[1], 140 * 1024, T4[1])
    e.i("ds_write_b32", T4[1], T4[0])
    e.i("v_mov_b32", T4[1], 140 * 1024)
    e.wait(vm=0, lgkm=0)
    e.i("s_barrier")
    e.i("ds_read_b128", v(104, 4), T4[1])
    e.wait(lgkm=0)
    e.i("v_or3_b32", T4[0], v(104), v(105), v(106))
    e.i("v_or_b32", T4[0], T4[0], v(107))
    e.nop(1)
    e.i("v_readfirstlane_b32", sT[0], T4[0])
    e.i("s_cmp_lg_u32", sT[0], 0)
    e.i("s_cbranch_scc1", "K1_fb")
    e.label("K1_norm")
    poll_test(e, sMASK, 2)
    e.i("s_cbranch_scc1", "FZ_f2_ok")
    b.add(e)
    tr += e.ins
    sl = Block()
    poll_loop(sl, "FZ_f2", sMASK, 2)
    b.add(sl)
    st = Block()
    P3.start(st)
    stamp(st, "p3s")
    b.add(st)
    tr += st.ins
    oe = Block()
    K.o_epilogue(oe)
    stamp(oe, "oE")
    pb, ptr, info = P3.build(oe)
    b.add(pb)
    tr += ptr
    if STAMPS:
        stamps_out(b)
    b.wait(vm=0)
    b.label("FZ_end")
    b.i("s_endpgm")
    K.fallback(b, t0=100, end_barrier=True)
    check(tr, "FZ")
    if OPT.get("verbose"):
        print(info)
    return b


def make(names=(), thr=THR):
    b = build(names, thr)
    return assemble_file([dict(label=NAME + "_kernel", grid=256, block=256, lds=163840, body=b.text(), nvgpr=512,
                               accum=256)])


if __name__ == "__main__":
    out = sys.argv[1]
    names = []
    thr = THR
    for x in sys.argv[2:]:
        if x.startswith("st="):
            names = x[3:].split(",")
        elif x == "fb":
            thr = -1.0
        elif x == "v":
            OPT["verbose"] = 1
    open(out, "w").write(make(names, thr))
```

```python
from layout import *

MF = "v_mfma_f32_16x16x32_bf16"
R = 6
STG = 20480
NM_STEPS, NZ = 7, 23
sW, sB, sP, sX, sOUT, sMISC = s(4, 4), s(8, 4), s(12, 4), s(16, 4), s(20, 4), s(28, 4)
sWo, sBo, sM0 = s(36), s(37), s(38)
sZ, sPO, sROLE, sNT, sRT0 = s(44), s(45), s(46), s(47), s(48)
sMASK = s(50, 2)
sT = [s(54), s(55), s(42), s(43), s(49), s(53)]
pWO, pW2, pX, pOUT, pB2 = (s(66 + 2 * i, 2) for i in range(5))
vWD = [v(192 + j) for j in range(5)]
vB = [v(197), v(198)]
vA = [[v(199), v(200)], [v(201), v(202)]]
vP = v(203)
ACC0 = 112
ACC = lambda nt, qt: v(ACC0 + (qt * 10 + nt) * 4, 4)
NA = 8
AF = [a(224 + 4 * i, 4) for i in range(NA)]
BF = [[[a(128 + (bf * 4 + ks * 2 + qt) * 4, 4) for qt in range(2)] for ks in range(2)] for bf in range(R)]
LOOK = 6
GAPS = [2, 6, 11, 15, 20, 24, 29, 33, 38]
BARG = 27
XO, CO, PO = [v(204 + j) for j in range(3)], [v(207 + j) for j in range(3)], [v(210 + j) for j in range(3)]
XV = [v(16 + 4 * j, 4) for j in range(3)]
BV = [v(28 + 4 * j, 4) for j in range(3)]
PV = [[v(40 + (j * 4 + k) * 4, 4) for k in range(4)] for j in range(3)]
GV = [v(216 + 8 * j, 8) for j in range(3)]
PKT = 96


def tag(i, t):
    i.note = t
    return i


def rd(stage, n, slot, x):
    ks, nt = divmod(n, 10)
    grp, st = divmod(stage, 3)
    off = st * STG + ks * 10240 + x * 5120 + 32 * nt
    return I("ds_read_b64_tr_b16", AF[slot].sub(2 * x, 2), vA[grp][nt & 1], mods=f"offset:{off}")


def w_dma(j):
    return I("buffer_load_dwordx4", vWD[j], sW, sWo, mods=f"offen offset:{1024 * (j & 3)} lds")


def b_load(buf, ks, qt):
    return I("buffer_load_dwordx4", BF[buf][ks][qt], vB[ks], sB, sBo, mods=f"offen offset:{1024 * qt} sc1")


def prefetch_ops(st):
    ops = [(I("s_add_u32", "m0", sM0, st * STG), w_dma(0))]
    ops += [(None, w_dma(1)), (None, w_dma(2)), (None, w_dma(3))]
    ops.append((I("s_add_u32", "m0", sM0, st * STG + 4096), w_dma(4)))
    for ks in range(2):
        for qt in range(2):
            ops.append((None, b_load(st, ks, qt)))
    return ops


def slot(u, n):
    return (20 * u + n) % NA


def vm_chain(name, table):
    vals = sorted(set(table.values()))
    out = []
    base = vals[0]
    for vv in vals[1:]:
        for z in sorted(z for z, x in table.items() if x == vv):
            out.append(I("s_cmp_eq_u32", sZ, z))
            out.append(I("s_cbranch_scc1", f"{name}_{vv}"))
    for vv in vals:
        if vv != base:
            out.append(Label(f"{name}_{vv}"))
        w = W(vm=min(vv, 63))
        w.note = f"vmw{vv}"
        out.append(w)
    return out


def step(u, vmtab):
    sal = {g: [] for g in range(40)}
    mem = {g: [] for g in range(40)}
    for n in range(20):
        m = n + LOOK
        st, mm = (u, m) if m < 20 else ((u + 1) % R, m - 20)
        for x in range(2):
            mem[2 * n + x].append(rd(st, mm, slot(u, m), x))
    for n in range(1, 21):
        sal[2 * n - 1].append(W(lgkm=2 * LOOK - 3))
    if u == 3:
        sal[0] += [I("s_cmp_eq_u32", sZ, 3),
                   I("s_cselect_b32", sW[0], pWO[0], sW[0]), I("s_cselect_b32", sW[1], pWO[1], sW[1]),
                   I("s_cselect_b32", sW[2], 4096 * 1280, sW[2]), I("s_cselect_b32", sWo, sT[4], sWo),
                   I("s_cselect_b32", sB[2], 0, sB[2])]
    if u == 1:
        sal[0] += [I("s_cmp_eq_u32", sZ, 19),
                   I("s_cselect_b32", sW[2], 0, sW[2]), I("s_cselect_b32", sB[2], 0, sB[2])]
    for (sc, me), g in zip(prefetch_ops((u + 4) % R), GAPS):
        if sc is not None:
            sal[g - 1].append(sc)
        mem[g].insert(0, me)
    sal[21].append(I("s_add_u32", sWo, sWo, 81920))
    sal[39].append(I("s_add_u32", sBo, sBo, 262144))
    sal[BARG] += vm_chain(f"P3w{u}", vmtab) + [I("s_barrier")]
    if u == 3:
        sal[30] += [I("s_cmp_ge_u32", sZ, 15), I("s_cselect_b32", s(3), 4, 3)]
        sal[31] += [I("s_add_u32", s(3), s(3), sNONCE)]
        mem[32].append(I("v_mov_b32", vFV, s(3)))
        mem[34].append(tag(flag_store(), "flag"))
    sal[36].append(I("s_add_u32", sZ, sZ, 1))
    b = Block()
    for g in range(40):
        n, qt = g >> 1, g & 1
        ks, nt = divmod(n, 10)
        b.add(I(MF, ACC(nt, qt), AF[slot(u, n)], BF[u][ks][qt], ACC(nt, qt)))
        b.add(sal[g])
        b.add(mem[g])
    return b


def store_partial(b, off_s, zero=False):
    n = 0
    for qt in range(2):
        for c in range(5):
            pk = v(PKT + 4 * (n % 3), 4)
            n += 1
            t0, t1 = ACC(2 * c, qt), ACC(2 * c + 1, qt)
            b.i("v_cvt_pk_bf16_f32", pk[0], t0[0], t0[1])
            b.i("v_cvt_pk_bf16_f32", pk[1], t0[2], t0[3])
            b.i("v_cvt_pk_bf16_f32", pk[2], t1[0], t1[1])
            b.i("v_cvt_pk_bf16_f32", pk[3], t1[2], t1[3])
            ch = qt * 5 + c
            b.i("s_add_u32", sT[0], off_s, ch * 4096)
            if zero:
                b.i("v_mov_b32", t0[0], 0)
            else:
                b.nop(1)
            b.i("v_permlane32_swap_b32", pk[0], pk[2])
            b.i("v_permlane32_swap_b32", pk[1], pk[3])
            if zero:
                b.i("v_mov_b32", t0[1], 0)
                b.i("v_mov_b32", t0[2], 0)
            else:
                b.nop(2)
            b.i("v_permlane16_swap_b32", pk[0], pk[2])
            b.i("v_permlane16_swap_b32", pk[1], pk[3])
            if zero:
                b.i("v_mov_b32", t0[3], 0)
            b.i("buffer_store_dwordx4", pk, vP, sP, sT[0], mods="offen sc1")
            if zero:
                for r in range(4):
                    b.i("v_mov_b32", t1[r], 0)


def args(b):
    ld_arg(b, pWO, "wo")
    ld_arg(b, pW2, "w2")
    ld_arg(b, pX, "x")
    ld_arg(b, pOUT, "out")
    ld_arg(b, pB2, "b2")


def addr(p):
    p.i("s_and_b32", sROLE, s(2), 3)
    p.i("s_bfe_u32", sT[0], s(2), 0x10002)
    p.i("s_bfe_u32", sNT, s(2), 0x20003)
    p.i("s_lshl_b32", sT[1], sQB, 1)
    p.i("s_add_u32", sT[0], sT[0], sT[1])
    p.i("s_lshl_b32", sRT0, sT[0], 3)
    vl, vw, t0, t1, t2, t3 = v(240), v(241), v(242), v(243), v(244), v(245)
    p.i("v_and_b32", vl, 63, v(0))
    p.i("v_lshrrev_b32", vw, 6, v(0))
    p.i("s_mul_i32", sT[1], sNT, 320)
    p.i("v_mul_u32_u24", t0, 320, vw)
    p.i("v_add_u32", t0, t0, vl)
    for j in range(5):
        p.i("v_add_u32", t1, 64 * j, t0)
        p.i("v_mul_u32_u24", t2, 52429, t1)
        p.i("v_lshrrev_b32", t2, 20, t2)
        p.i("v_mul_u32_u24", t3, 20, t2)
        p.i("v_sub_u32", t1, t1, t3)
        p.i("v_bfe_u32", t3, t2, 2, 1)
        p.i("v_lshlrev_b32", t3, 1, t3)
        p.i("v_xor_b32", t1, t1, t3)
        p.i("v_mul_u32_u24", t2, 1280, t2)
        p.i("v_lshl_add_u32", t2, t1, 4, t2)
        if j & 3:
            p.i("v_add_u32", t2, sT[1], t2)
            p.i("v_subrev_u32", vWD[j], 1024 * (j & 3), t2)
        else:
            p.i("v_add_u32", vWD[j], sT[1], t2)
    p.i("s_lshl_b32", sT[0], sWAVE, 1)
    p.i("s_add_u32", sT[0], sT[0], sRT0)
    p.i("s_lshl_b32", sT[0], sT[0], 10)
    p.i("v_lshlrev_b32", vB[0], 4, vl)
    p.i("v_add_u32", vB[0], sT[0], vB[0])
    p.i("v_add_u32", vB[1], 131072, vB[0])
    p.i("v_lshrrev_b32", t0, 4, vl)
    p.i("v_bfe_u32", t1, vl, 2, 2)
    p.i("v_lshl_add_u32", t1, t0, 2, t1)
    p.i("v_mul_u32_u24", t1, 320, t1)
    p.i("v_and_b32", t2, 3, vl)
    p.i("v_lshl_add_u32", t1, t2, 3, t1)
    p.i("v_and_b32", t0, 1, t0)
    p.i("v_lshlrev_b32", t0, 5, t0)
    p.i("v_add_u32", vA[0][0], t1, t0)
    p.i("v_sub_u32", vA[0][1], t1, t0)
    p.i("v_add_u32", vA[1][0], 3 * STG, vA[0][0])
    p.i("v_add_u32", vA[1][1], 3 * STG, vA[0][1])
    p.i("v_lshlrev_b32", vP, 4, vl)


def pf_burst(p, st):
    for sc, me in prefetch_ops(st):
        if sc is not None:
            p.add(sc)
            p.i("s_nop", 0)
        p.add(me)
    p.i("s_add_u32", sWo, sWo, 81920)
    p.i("s_add_u32", sBo, sBo, 262144)


def start(p):
    srd(p, sW, pW2, 1728 * 1280)
    srd_off(p, sB, pWS, H_OFF, H_SIZE)
    p.i("s_mul_i32", sWo, sROLE, 7 * 81920)
    p.i("s_mul_i32", sBo, sROLE, 14 * 131072)
    p.i("s_mul_i32", sT[4], sROLE, 1024 * 1280)
    p.i("s_mul_i32", sM0, sWAVE, 5120)
    for st in range(3):
        pf_burst(p, st)
        if st == 0 and TOUCH["h"]:
            p.i("s_mul_i32", sT[0], sROLE, 14 * 131072)
            touch_act(p, sB, 14, sT[0])
    srd_off(p, sP, pWS, PS_OFF, 2 * 0xC00000)
    p.i("s_lshr_b32", sT[0], s(2), 2)
    p.i("s_lshl_b32", sT[0], sT[0], 2)
    p.i("s_add_u32", sT[0], sT[0], sWAVE)
    p.i("s_mul_i32", sT[0], sT[0], 40)
    p.i("s_add_u32", sT[0], sT[0], sROLE)
    p.i("s_lshl_b32", sPO, sT[0], 10)
    p.i("s_add_u32", sPO, sPO, PM_OFF - PS_OFF)
    p.i("s_lshl_b32", sT[0], sROLE, 1)
    p.i("s_lshl_b32", sMASK[0], 0x03030303, sT[0])
    p.i("s_mov_b32", sMASK[1], 0)


TOUCH = dict(w=1, h=1, o=1)
vDUMMY = v(92)


def touch(b, srdreg, voff, n=1, stride=8192, sc1=False):
    for k in range(n):
        so = 0
        if k:
            b.i("s_mov_b32", s(3), k * stride)
            so = s(3)
        b.i("buffer_load_dword", vDUMMY, voff, srdreg, so, mods="offen" + (" sc1" if sc1 else ""))


sTW2, sTWO = s(28, 4), s(24, 4)
vTW = [v(93), v(94), v(95)]


def touch_w_addr(b):
    t0, t1 = v(240), v(241)
    role = sT[0]
    b.i("s_and_b32", role, s(2), 3)
    b.i("s_lshr_b32", sT[1], s(2), 3)
    b.i("s_lshl_b32", sT[1], sT[1], 2)
    b.i("s_add_u32", sT[1], sT[1], sWAVE)
    b.i("v_and_b32", t0, 63, v(0))
    b.i("v_mov_b32", t1, OOB)
    b.i("s_mul_i32", s(3), role, 7 * 81920)
    b.i("s_mul_i32", sT[4], sT[1], 35 * 128)
    b.i("s_add_u32", s(3), s(3), sT[4])
    b.i("v_cmp_gt_u32", "vcc", 35, t0)
    b.i("v_lshl_add_u32", vTW[0], t0, 7, s(3))
    srd(b, sTW2, pW2, 0)
    b.i("v_cndmask_b32", vTW[0], t1, vTW[0], "vcc")
    b.i("s_mul_i32", s(3), role, 1024 * 1280)
    b.i("s_mul_i32", sT[4], sT[1], 80 * 128)
    b.i("s_add_u32", s(3), s(3), sT[4])
    b.i("v_cmp_gt_u32", "vcc", 16, t0)
    b.i("v_lshl_add_u32", vTW[1], t0, 7, s(3))
    srd(b, sTWO, pWO, 0)
    b.i("v_add_u32", vTW[2], 8192, vTW[1])
    b.i("v_cndmask_b32", vTW[2], t1, vTW[2], "vcc")


def touch_w_open(cnt):
    return [I("s_cmp_eq_u32", cnt, 1), I("s_cselect_b32", sTW2[2], 1728 * 1280, 0),
            I("s_cselect_b32", sTWO[2], 4096 * 1280, 0)]


def touch_w_loads():
    return [I("buffer_load_dword", vDUMMY, vTW[0], sTW2, 0, mods="offen"),
            I("buffer_load_dword", vDUMMY, vTW[1], sTWO, 0, mods="offen"),
            I("buffer_load_dword", vDUMMY, vTW[2], sTWO, 0, mods="offen")]


def touch_act(b, srdreg, nk, kbase):
    t0, t1 = v(93), v(94)
    per = nk * 16
    per = nk * 4
    b.i("s_lshl_b32", sT[1], sNT, 2)
    b.i("s_add_u32", sT[1], sT[1], sWAVE)
    b.i("s_mul_i32", sT[1], sT[1], per)
    b.i("v_and_b32", t0, 63, v(0))
    n = (per + 63) // 64
    for k in range(n):
        b.i("v_add_u32", t1, sT[1], t0)
        if k:
            b.i("v_add_u32", t1, 64 * k, t1)
        b.i("v_lshrrev_b32", v(95), 6, t1)
        b.i("v_and_b32", t1, 63, t1)
        b.i("v_lshlrev_b32", t1, 7, t1)
        b.i("v_lshl_add_u32", t1, v(95), 17, t1)
        b.i("s_lshl_b32", s(3), sRT0, 10)
        b.i("s_add_u32", s(3), s(3), kbase)
        b.i("v_add_u32", t1, s(3), t1)
        rem = per - 64 * k
        if rem < 64:
            b.i("v_cmp_gt_u32", "vcc", rem, t0)
            b.i("v_mov_b32", v(95), OOB)
            b.nop(1)
            b.i("v_cndmask_b32", t1, v(95), t1, "vcc")
        touch(b, srdreg, t1, sc1=True)
    return n


def zero_acc(b):
    for r in range(ACC0, ACC0 + 80):
        b.i("v_mov_b32", v(r), 0)


def final_addr(e):
    vl, t0, t1 = v(240), v(241), v(242)
    e.i("v_and_b32", vl, 63, v(0))
    srd(e, sX, pX, 2048 * 1280)
    srd(e, sOUT, pOUT, 2048 * 1280)
    srd(e, sMISC, pB2, 1280)
    e.i("s_lshl_b32", sT[0], sRT0, 4)
    e.i("s_lshl_b32", sT[1], sROLE, 5)
    e.i("s_add_u32", sT[0], sT[0], sT[1])
    e.i("v_and_b32", t0, 15, vl)
    e.i("v_add_u32", t0, sT[0], t0)
    e.i("v_mul_u32_u24", t0, 1280, t0)
    e.i("v_lshrrev_b32", t1, 4, vl)
    e.i("v_lshlrev_b32", t1, 4, t1)
    e.i("s_mul_i32", sT[1], sNT, 320)
    e.i("v_add_u32", t1, sT[1], t1)
    e.i("s_and_b32", sT[2], s(2), 0xFC)
    e.i("s_add_u32", sT[2], sT[2], sROLE)
    e.i("s_mul_i32", sT[2], sT[2], 40 * 1024)
    for j in range(3):
        e.i("s_add_u32", sT[0], sWAVE, 4 * j)
        e.i("s_cmp_ge_u32", sT[0], 5)
        e.i("s_cselect_b32", sT[3], 16 * 1280, 0)
        e.i("s_cselect_b32", sT[4], 5, 0)
        e.i("s_sub_u32", sT[4], sT[0], sT[4])
        e.i("s_lshl_b32", sT[4], sT[4], 6)
        e.i("s_cmp_ge_u32", sT[0], 10)
        e.i("s_cselect_b32", sT[5], OOB, 0)
        e.i("s_add_u32", sT[4], sT[4], sT[5])
        e.i("v_add_u32", CO[j], sT[4], t1)
        e.i("v_add_u32", XO[j], sT[3], t0)
        e.i("v_add_u32", XO[j], XO[j], CO[j])
        e.i("s_lshl_b32", sT[0], sT[0], 12)
        e.i("s_add_u32", sT[0], sT[0], sT[2])
        e.i("s_add_u32", sT[0], sT[0], sT[5])
        e.i("v_lshlrev_b32", PO[j], 4, vl)
        e.i("v_add_u32", PO[j], sT[0], PO[j])


def tile_mask(b):
    b.i("s_and_b32", sT[0], s(2), 28)
    b.i("s_lshl_b32", sMASK[0], 15, sT[0])
    b.i("s_mov_b32", sMASK[1], 0)


def sum4(e, j, dst, tmp):
    for h in range(4):
        lo16(e, dst[2 * h], PV[j][0][h])
        hi16(e, dst[2 * h + 1], PV[j][0][h])
    for k in range(1, 4):
        for h in range(4):
            lo16(e, tmp[2 * h], PV[j][k][h])
            hi16(e, tmp[2 * h + 1], PV[j][k][h])
        for h in range(4):
            e.i("v_pk_add_f32", dst.sub(2 * h, 2), dst.sub(2 * h, 2), tmp.sub(2 * h, 2))


def build(pre_ops_after, on_pre=None):
    seq = [("o", 0)] * 16
    for z in range(3):
        seq += [("pf", z)] * 9
        if z == 0 and TOUCH["h"]:
            seq.append(("t", 0))
    waits = {}
    w_pre = len(seq) - max(i for i, t in enumerate(seq) if t == ("pf", 0)) - 1
    seq += [("flag", 0)] + [("pf", 3)] * 9
    side_w = {}
    for z in range(NZ):
        if z == 4:
            seq.append(("poll3", 0))
        if z == 5:
            side_w[5] = len(seq) - seq.index(("poll3", 0)) - 1
            seq += [("pf", 7)] * 4 + [("pf", 8)] * 4
            if TOUCH["o"]:
                seq += [("t", 0)] * 2
        if z == 18:
            seq.append(("poll4", 0))
        if z == 19:
            side_w[19] = len(seq) - seq.index(("poll4", 0)) - 1
            seq += [("fin", 0)] * 18
        k = 0
        evs = sorted([(g, "pf", i) for i, g in enumerate(GAPS)] + ([(34, "flag", 0)] if z % R == 3 else []) +
                     [(BARG - 0.5, "wait", 0)])
        for g, kind, i in evs:
            if kind == "pf":
                dummy = (i >= 5 and z in (3, 4))
                seq.append(("dummy", 0) if dummy else ("pf", z + 4))
            elif kind == "flag":
                seq.append(("flag", z))
            else:
                need = [i2 for i2, t in enumerate(seq) if t == ("pf", z + 1)]
                waits[z] = len(seq) - max(need) - 1 if need and z + 1 < NZ else 24
                if z == 15:
                    lastm = max(i2 for i2, t in enumerate(seq) if t[0] == "mst")
                    waits[z] = min(waits[z], len(seq) - lastm - 1)
        if z == NM_STEPS - 1:
            seq += [("mst", 0)] * 10
    waits = {z: min(w, 63) for z, w in waits.items()}
    tabs = {u: {z: waits[z] for z in range(NZ) if z % R == u} for u in range(R)}
    steps = [step(u, tabs[u]) for u in range(R)]

    b = Block()
    tr = []
    p = Block()
    p.add(pre_ops_after)
    start(p)
    stamp(p, "p3s")
    zero_acc(p)
    p.i("s_mov_b32", sZ, 0)
    set_phase(p, 3)
    p.wait(vm=w_pre)
    p.i("s_barrier")
    p.add(flag_store())
    stamp(p, "oflag")
    pf_burst(p, 3)
    for n in range(LOOK):
        for x in range(2):
            p.add(rd(0, n, slot(0, n), x))
    p.wait(lgkm=2 * (LOOK - 1))
    stamp(p, "p3first")
    b.add(p)
    tr += p.ins

    side = {}
    x = Block()
    poll_load(x, sMASK)
    side[4] = (x, x.ins)
    x = Block()
    x.wait(vm=side_w[5])
    poll_test(x, sMASK, 3)
    x.i("s_cbranch_scc1", "P3_opoll_ok")
    sl = Block()
    poll_loop(sl, "P3_opoll", sMASK, 3)
    y = Block()
    srd_off(y, sB, pWS, O_OFF, O_SIZE)
    y.i("s_mul_i32", sBo, sROLE, 32 * 131072)
    for st in (7 % R, 8 % R):
        for ks in range(2):
            for qt in range(2):
                y.add(b_load(st, ks, qt))
        y.i("s_add_u32", sBo, sBo, 262144)
    if TOUCH["o"]:
        y.i("s_mul_i32", sT[0], sROLE, 32 * 131072)
        touch_act(y, sB, 32, sT[0])
    tile_mask(y)
    full = Block()
    full.add(x)
    full.add(sl)
    full.add(y)
    side[5] = (full, x.ins + y.ins)
    x = Block()
    poll_load(x, sMASK)
    side[18] = (x, x.ins)
    x = Block()
    x.wait(vm=side_w[19])
    poll_test(x, sMASK, 4)
    x.i("s_cbranch_scc1", "P3_mpoll_ok")
    sl = Block()
    poll_loop(sl, "P3_mpoll", sMASK, 4)
    y = Block()
    final_addr(y)
    y.i("s_mov_b32", sT[4], PM_OFF - PS_OFF)
    for j in range(3):
        for k in range(4):
            y.i("buffer_load_dwordx4", PV[j][k], PO[j], sP, sT[4], mods=f"offen offset:{1024 * k} sc1")
        y.i("buffer_load_dwordx4", XV[j], XO[j], sX, 0, mods="offen")
        y.i("buffer_load_dwordx4", BV[j], CO[j], sMISC, 0, mods="offen")
    full = Block()
    full.add(x)
    full.add(sl)
    full.add(y)
    side[19] = (full, x.ins + y.ins)

    bound = Block()
    bound.nop(8)
    store_partial(bound, sPO, zero=True)
    bound.i("s_sub_u32", sPO, sPO, PM_OFF - PS_OFF)
    bound.nop(2)
    stamp(bound, "mE")

    b.label("P3_loop")
    for u in range(R):
        for z in side:
            if z % R == u:
                b.i("s_cmp_eq_u32", sZ, z)
                b.i("s_cbranch_scc1", f"P3_side{z}")
        b.label(f"P3_u{u}")
        b.add(steps[u])
        if u == (NM_STEPS - 1) % R:
            b.i("s_cmp_eq_u32", sZ, NM_STEPS)
            b.i("s_cbranch_scc1", "P3_bound")
        if u == (NZ - 1) % R:
            b.i("s_cmp_eq_u32", sZ, NZ)
            b.i("s_cbranch_scc1", "P3_fin")
        if u < R - 1:
            b.label(f"P3_t{u + 1}")
    b.i("s_branch", "P3_loop")
    b.label("P3_bound")
    b.add(bound)
    b.i("s_branch", f"P3_t{NM_STEPS % R}")
    for z, (full, _) in side.items():
        b.label(f"P3_side{z}")
        b.add(full)
        b.i("s_branch", f"P3_u{z % R}")
    for z in range(NZ):
        if z in side:
            tr += side[z][1]
        wz = waits[z]
        for ins in steps[z % R].ins:
            nt_ = getattr(ins, "note", "")
            if nt_.startswith("vmw") and int(nt_[3:]) < wz:
                continue
            tr.append(ins)
        if z == NM_STEPS - 1:
            tr += bound.ins

    b.label("P3_fin")
    e = Block()
    stamp(e, "sE")
    e.nop(8)
    store_partial(e, sPO)
    e.wait(vm=10)
    e.i("s_mov_b32", sT[0], f2u(-1.4426950408889634))
    tmp, EE = v(240, 8), v(248, 8)
    for j in range(3):
        G = GV[j]
        sum4(e, j, G, tmp)
        for h in range(4):
            lo16(e, tmp[2 * h], BV[j][h])
            hi16(e, tmp[2 * h + 1], BV[j][h])
        for h in range(4):
            e.i("v_pk_add_f32", G.sub(2 * h, 2), G.sub(2 * h, 2), tmp.sub(2 * h, 2))
        for q in range(8):
            e.i("v_mul_f32", EE[q], sT[0], G[q])
        for q in range(8):
            e.i("v_exp_f32", EE[q], EE[q])
        for h in range(4):
            e.i("v_pk_add_f32", EE.sub(2 * h, 2), EE.sub(2 * h, 2), 1.0)
        for q in range(8):
            e.i("v_rcp_f32", EE[q], EE[q])
        e.nop(1)
        for h in range(4):
            e.i("v_pk_mul_f32", G.sub(2 * h, 2), G.sub(2 * h, 2), EE.sub(2 * h, 2))
    set_phase(e, 5)
    e.wait(vm=0)
    e.i("s_barrier")
    e.add(flag_store())
    stamp(e, "gE")
    poll_loop(e, "P3_spoll", sMASK, 5)
    stamp(e, "polled")
    for j in range(3):
        for k in range(4):
            e.i("buffer_load_dwordx4", PV[j][k], PO[j], sP, 0, mods=f"offen offset:{1024 * k} sc1")
    SS = v(96, 8)
    for j in range(3):
        e.wait(vm=4 * (2 - j) + j)
        sum4(e, j, SS, tmp)
        for h in range(4):
            lo16(e, tmp[2 * h], XV[j][h])
            hi16(e, tmp[2 * h + 1], XV[j][h])
        for h in range(4):
            e.i("v_pk_fma_f32", SS.sub(2 * h, 2), SS.sub(2 * h, 2), GV[j].sub(2 * h, 2), tmp.sub(2 * h, 2))
        for h in range(4):
            e.i("v_cvt_pk_bf16_f32", XV[j][h], SS[2 * h], SS[2 * h + 1])
        e.i("buffer_store_dwordx4", XV[j], XO[j], sOUT, 0, mods="offen")
    stamp(e, "end")
    b.add(e)
    tr += [x for x in e.ins]
    return b, tr, dict(waits=waits, side=side_w, pre=w_pre)
```

```python
import sys
from layout import *
import layout as LY
from common import assemble_file, NAME
import k1 as K
import p3 as P3
import attn16 as A
from attn16 import (MF, L, NM, S, P, Q, O, KF, VF, sKSRD, sVSRD, sTOFF, sMK, sMV, dma_k, dma_v, k_read)
from k1 import (sWQ, sW1, sXN, sO, sH, sMISC, sWQo, sW1o, sXNo, sMWQ, sMW1, sCNT, sMKp, sMVp, sSC, sT, pA, pB, pC, pD,
                pE, pF, sC, WRING, vWQD, vW1D, vXN, vWQA, vW1A, vDUM, HACC, BBUF, a_read, wq_dma, w1_dma,
                qk_raw, tile_max, xlane_op4, THR)

OPT = dict()
pXin = s(76, 2)
pDBG = s(62, 2)
sMASK = P3.sMASK


def xn_load(buf, qt):
    return I("buffer_load_dwordx4", BBUF[buf][qt], vXN, sXN, sXNo, mods=f"offen offset:{1024 * qt} sc1")


K.xn_load = xn_load


def layernorm(b, vst, vrow, vj):
    X, PK = v(32, 40), v(72, 20)
    acc, mean, tmp, mb, den, d, var = v(92, 2), v(94), v(95), v(96), v(98), v(100, 2), v(108)
    cM, cE = sC[0], sC[1]
    b.i("s_mov_b32", cM, f2u(1.0 / 640.0))
    b.i("s_mov_b32", cE, f2u(1e-5))
    for t in range(1, 5):
        b.i("s_mov_b32", sC[1 + t], t * 524288)

    def denom(dst):
        bf16_round(b, dst, tmp)
        b.i("v_add_f32", dst, cE, dst)
        bf16_round(b, dst, tmp)
        b.i("v_sqrt_f32", dst, dst)
        b.nop(1)
        bf16_round(b, dst, tmp)

    b.wait(vm=9)
    stamp(b, "xin")
    for r in range(20):
        lo16(b, X[2 * r], PK[r])
        hi16(b, X[2 * r + 1], PK[r])
    acc2 = v(104, 2)
    b.i("v_pk_add_f32", acc, X.sub(0, 2), X.sub(4, 2))
    b.i("v_pk_add_f32", acc2, X.sub(2, 2), X.sub(6, 2))
    for r in range(4, 20):
        t = acc2 if r & 1 else acc
        b.i("v_pk_add_f32", t, t, X.sub(2 * r, 2))
    b.i("v_pk_add_f32", acc, acc, acc2)
    b.i("v_add_f32", mean, acc[0], acc[1])
    dpp_row_sum(b, mean)
    b.i("v_mul_f32", mean, cM, mean)
    mm = Reg("v", mean.idx, 2)
    d2 = v(102, 2) if False else v(110, 2)
    for r in range(20):
        dd_, t = (d2, acc2) if r & 1 else (d, acc)
        b.i("v_pk_add_f32", dd_, X.sub(2 * r, 2), mm, mods="op_sel_hi:[1,0] neg_lo:[0,1] neg_hi:[0,1]")
        if r < 2:
            b.i("v_pk_mul_f32", t, dd_, dd_)
        else:
            b.i("v_pk_fma_f32", t, dd_, dd_, t)
    b.i("v_pk_add_f32", acc, acc, acc2)
    b.i("v_add_f32", den, acc[0], acc[1])
    dpp_row_sum(b, den)
    b.i("v_mul_f32", den, cM, den)
    b.i("v_mov_b32", var, den)
    b.i("v_mov_b32", mb, mean)
    bf16_round(b, mb, tmp)
    denom(den)
    b.i("v_rcp_f32", den, den)
    mm = Reg("v", mb.idx, 2)
    dd = Reg("v", den.idx, 2)
    tm2 = v(109)
    for r in range(0, 20, 2):
        prs = ((d, tmp, r), (d2, tm2, r + 1))
        for dx, tx, rr in prs:
            b.i("v_pk_add_f32", dx, X.sub(2 * rr, 2), mm, mods="op_sel_hi:[1,0] neg_lo:[0,1] neg_hi:[0,1]")
        for dx, tx, rr in prs:
            b.i("v_cvt_pk_bf16_f32", tx, dx[0], dx[1])
        for dx, tx, rr in prs:
            lo16(b, dx[0], tx)
            hi16(b, dx[1], tx)
        for dx, tx, rr in prs:
            b.i("v_pk_mul_f32", dx, dx, dd, mods="op_sel_hi:[1,0]")
        for dx, tx, rr in prs:
            b.i("v_cvt_pk_bf16_f32", PK[rr], dx[0], dx[1])
        if (r + 2) % 4 == 0:
            t = (r + 2) // 4 - 1
            b.i("buffer_store_dwordx4", PK.sub(4 * t, 4), vst, sXN, sC[1 + t] if t else 0, mods="offen sc1")
    b.i("v_mul_f32", var, var, den)
    b.i("v_mul_f32", var, var, den)
    denom(var)
    b.i("v_rcp_f32", var, var)
    srd_off(b, sMISC, pWS, R2_OFF, 8192)
    b.i("v_cmp_eq_u32", "vcc", 0, vj)
    b.i("v_lshlrev_b32", vrow, 2, vrow)
    b.i("v_mov_b32", tmp, OOB)
    b.i("v_cndmask_b32", vrow, tmp, vrow, "vcc")
    b.i("buffer_store_dword", var, vrow, sMISC, 0, mods="offen sc1")


def setup(b):
    ld_arg(b, pXin, "x")
    ld_arg(b, pWS, "ws")
    ld_arg(b, pDBG, "dbg")
    ld_arg(b, pC, "wq")
    ld_arg(b, pD, "w1")
    ld_arg(b, pA, "k")
    ld_arg(b, pB, "v")
    ld_arg(b, pE, "b1")
    b.i("s_memrealtime", s(100, 2))
    b.i("s_cmp_ge_u32", s(2), 256)
    b.i("s_cbranch_scc1", "FZ_end")
    stamp(b, "start")
    b.i("s_and_b32", sT[0], s(2), 7)
    b.i("s_lshl_b32", sT[0], sT[0], 2)
    b.i("s_bfe_u32", sT[1], s(2), 0x20003)
    b.i("s_add_u32", sHEAD, sT[0], sT[1])
    b.i("s_lshr_b32", sQB, s(2), 5)
    vl, vw, t0, t1, t2, t3 = v(200), v(201), v(202), v(203), v(204), v(205)
    b.i("v_and_b32", vl, 63, v(0))
    b.i("v_lshrrev_b32", vw, 6, v(0))
    vld, vst, vrow, vj = v(102), v(103), v(106), v(107)
    b.i("v_lshrrev_b32", vrow, 4, v(0))
    b.i("v_readfirstlane_b32", sWAVE, vw)
    b.i("s_lshl_b32", s(3), s(2), 3)
    b.i("v_add_u32", vrow, s(3), vrow)
    b.i("v_and_b32", vj, 15, v(0))
    b.i("v_mul_u32_u24", vld, 1280, vrow)
    b.i("v_lshl_add_u32", vld, vj, 4, vld)
    b.i("s_lshl_b32", sT[0], sQB, 5)
    b.i("s_and_b32", sT[1], s(2), 31)
    b.i("s_cmp_eq_u32", sT[1], 0)
    b.i("s_cselect_b32", sT[1], sT[0], OOB)
    b.i("v_mov_b32", t0, OOB)
    b.i("v_mov_b32", t1, sT[1])
    b.i("v_cmp_eq_u32", "vcc", 0, v(0))
    b.wait(lgkm=0)
    b.nop(2)
    b.i("v_cndmask_b32", t0, t0, t1, "vcc")
    b.i("s_and_b32", s(100), s(100), 0x7FFFFFF8)
    b.i("s_or_b32", s(100), s(100), 0x80000000)
    srd(b, sMISC, pDBG, 256)
    b.i("v_mov_b32", t1, s(100))
    b.i("buffer_store_dword", t1, t0, sMISC, 0, mods="offen sc1")
    PK = v(72, 20)
    srd(b, sO, pXin, 2048 * 1280)
    b.i("s_cmp_ge_u32", sWAVE, 2)
    b.i("s_cbranch_scc1", "FZ_nox")
    for t in range(5):
        b.i("buffer_load_dwordx4", PK.sub(4 * t, 4), vld, sO, 0, mods=f"offen offset:{256 * t}")
    b.label("FZ_nox")
    b.i("v_lshrrev_b32", t0, 4, vl)
    b.i("v_and_b32", t1, 15, vl)
    b.i("v_lshlrev_b32", t2, 2, t0)
    b.i("v_xor_b32", t2, t1, t2)
    b.i("v_lshlrev_b32", t2, 4, t2)
    b.i("v_lshl_add_u32", t3, vw, 3, t0)
    b.i("v_lshl_add_u32", t2, t3, 13, t2)
    b.i("s_lshl_b32", sT[0], sHEAD, 8)
    b.i("v_add_u32", vWQD[0], sT[0], t2)
    b.i("v_add_u32", vWQD[1], 4 * 8192 - 1024, vWQD[0])
    b.i("v_lshrrev_b32", t2, 3, vl)
    b.i("v_lshl_add_u32", t2, vw, 3, t2)
    b.i("v_mul_u32_u24", vW1D, 3456, t2)
    b.i("v_and_b32", t2, 1, t0)
    b.i("v_and_b32", t3, 1, vw)
    b.i("v_lshl_add_u32", t2, t3, 1, t2)
    b.i("v_lshlrev_b32", t2, 1, t2)
    b.i("v_and_b32", t3, 7, vl)
    b.i("v_xor_b32", t2, t2, t3)
    b.i("v_lshl_add_u32", vW1D, t2, 4, vW1D)
    b.i("s_lshl_b32", sT[0], sHEAD, 7)
    b.i("v_add_u32", vW1D, sT[0], vW1D)
    srd(b, sWQ, pC, 640 * 8192)
    srd(b, sW1, pD, 640 * 3456)
    b.i("s_cmp_lt_u32", sHEAD, 27)
    b.i("s_cselect_b32", sW1[2], 640 * 3456, 0)
    b.i("s_lshl_b32", sT[0], sWAVE, 11)
    b.i("s_add_u32", sMWQ, sT[0], WRING)
    b.i("s_mov_b32", sMK, sT[0])
    b.i("s_add_u32", sMV, sT[0], 65536)
    b.i("s_lshl_b32", sT[0], sWAVE, 10)
    b.i("s_add_u32", sMW1, sT[0], WRING + 8192)
    b.i("s_mov_b32", sWQo, 0)
    b.i("s_mov_b32", sW1o, 0)
    b.i("s_mov_b32", sXNo, 0)

    def wfill(st):
        b.i("s_add_u32", "m0", sMWQ, st * 12288)
        b.i("s_nop", 0)
        b.add(wq_dma(0))
        b.add(wq_dma(1))
        b.i("s_add_u32", "m0", sMW1, st * 12288)
        b.i("s_add_u32", sWQo, sWQo, 262144)
        b.add(w1_dma())
        b.i("s_add_u32", sW1o, sW1o, 110592)
    for st in range(3):
        wfill(st)
    b.i("s_lshl_b32", sT[0], sQB, 4)
    b.i("s_lshl_b32", sT[1], sWAVE, 2)
    b.i("s_add_u32", sT[2], sT[0], sT[1])
    b.i("s_lshl_b32", sT[0], sT[2], 10)
    b.i("v_lshlrev_b32", vXN, 4, vl)
    b.i("v_add_u32", vXN, sT[0], vXN)
    srd_off(b, sXN, pWS, XN_OFF, XN_SIZE)
    srd_off(b, sFLG, pWS, FLAG_OFF, FLAG_SIZE)
    b.i("v_lshrrev_b32", t0, 2, vj)
    b.i("v_lshlrev_b32", vst, 17, t0)
    b.i("v_lshrrev_b32", t0, 4, vrow)
    b.i("v_lshl_add_u32", vst, t0, 10, vst)
    b.i("v_and_b32", t0, 3, vj)
    b.i("v_lshl_add_u32", vst, t0, 8, vst)
    b.i("v_and_b32", t0, 15, vrow)
    b.i("v_lshl_add_u32", vst, t0, 4, vst)

    def rest():
        b.i("s_lshl_b32", sT[0], sHEAD, 19)
        srd_off(b, sKSRD, pA, sT[0], 524288)
        srd_off(b, sVSRD, pB, sT[0], 524288)
        A.addr_setup(b, vl, vw, [t0, t1, t2, t3])
        b.i("v_lshrrev_b32", t0, 4, vl)
        b.i("v_bfe_u32", t1, vl, 2, 2)
        b.i("v_and_b32", t2, 3, vl)
        b.i("v_lshl_add_u32", t3, t0, 3, t1)
        b.i("v_lshlrev_b32", vWQA[0], 8, t3)
        b.i("v_lshl_add_u32", vWQA[0], t1, 6, vWQA[0])
        b.i("v_lshl_add_u32", vWQA[0], t2, 4, vWQA[0])
        b.i("v_add_u32", vWQA[0], WRING, vWQA[0])
        for ks in range(1, 4):
            b.i("v_xor_b32", vWQA[ks], 64 * ks, vWQA[0])
        b.i("v_lshlrev_b32", vW1A[0], 7, t3)
        b.i("v_lshl_add_u32", vW1A[0], t2, 3, vW1A[0])
        b.i("v_lshrrev_b32", t1, 1, t1)
        b.i("v_and_b32", t0, 1, t0)
        b.i("v_lshl_add_u32", t1, t0, 1, t1)
        b.i("v_lshl_add_u32", vW1A[0], t1, 5, vW1A[0])
        b.i("v_add_u32", vW1A[0], WRING + 8192, vW1A[0])
        for ft in range(1, 4):
            b.i("v_xor_b32", vW1A[ft], 32 * ft, vW1A[0])
        b.i("s_mov_b32", sMKp, sMK)
        b.i("s_mov_b32", sMVp, sMV)
        b.i("s_mov_b32", sTOFF, 0)
        b.i("s_mov_b32", sCNT, 5)
        b.i("s_mov_b32", sSC[0], f2u(128 ** -0.5 * 1.4426950408889634))
        b.i("s_mov_b32", sSC[1], f2u(128 ** -0.5 * 1.4426950408889634))
    rest()
    b.i("s_cmp_ge_u32", sWAVE, 2)
    b.i("s_cbranch_scc1", "FZ_noln")
    layernorm(b, vst, vrow, vj)
    b.label("FZ_noln")
    stamp(b, "lnE")
    FR.update(o=v(34), v=v(32), p=v(35), t=v(33))
    srd(b, sMISC, pDBG, 256)
    b.i("s_lshl_b32", sT[0], sQB, 5)
    b.i("v_mov_b32", v(36), sT[0])
    b.i("buffer_load_dword", v(37), v(36), sMISC, 0, mods="offen sc1")
    flag_addr(b, v(38))
    for r in range(48, 240):
        b.i("v_mov_b32", v(r), 0)
    for r in range(128):
        b.i("v_accvgpr_write_b32", a(r), 0)
    b.i("s_mov_b32", s(79), 1 << 16)
    b.label("FZ_nonce")
    b.wait(vm=0)
    b.i("v_readfirstlane_b32", sNONCE, v(37))
    b.i("s_sub_u32", s(79), s(79), 1)
    b.i("s_cmp_eq_u32", s(79), 0)
    b.i("s_cbranch_scc1", "FZ_nonce_ok")
    b.i("s_cmp_lg_u32", sNONCE, 0)
    b.i("s_cbranch_scc1", "FZ_nonce_ok")
    b.i("buffer_load_dword", v(37), v(36), sMISC, 0, mods="offen sc1")
    b.i("s_branch", "FZ_nonce")
    b.label("FZ_nonce_ok")
    set_phase(b, 1)
    b.i("s_barrier")
    b.add(flag_store())
    b.i("s_mov_b32", s(100), -1)
    b.i("s_mov_b32", s(101), 0)
    b.i("s_mov_b64", pF, s(100, 2))
    b.i("s_cmp_lg_u32", sWAVE, 0)
    b.i("s_cbranch_scc1", "FZ_f1_ok")
    poll_loop(b, "FZ_f1", pF, 1)
    b.i("s_barrier")
    stamp(b, "f1")
    for st in range(3):
        if st == 2:
            b.i("buffer_load_dword", vDUM, vXN, sXN, 0, mods="offen")
            wfill(3)
        for qt in range(4):
            b.add(xn_load(st, qt))
        b.i("s_add_u32", sXNo, sXNo, 131072)
    FR.update(o=vFO, v=vFV, p=vFP, t=vFT)
    for n in range(24):
        b.add(a_read(0, 0, n))
    b.wait(vm=12, lgkm=0)


R2V = [v(240 + i) for i in range(4)]
B1P = v(244, 8)


def q_epilogue(b):
    t0, t1 = v(21), v(22)
    srd_off(b, sMISC, pWS, R2_OFF, 8192)
    b.i("s_lshl_b32", sT[0], sT[2], 6)
    b.i("v_and_b32", t0, 15, v(0))
    b.i("v_lshl_add_u32", t0, t0, 2, sT[0])
    for qt in range(4):
        b.i("buffer_load_dword", R2V[qt], t0, sMISC, 0, mods=f"offen offset:{64 * qt} sc1")
    srd(b, sW1, pE, 1728 * 2)
    b.i("s_lshl_b32", sT[0], sHEAD, 7)
    b.i("v_bfe_u32", t1, v(0), 4, 2)
    b.i("v_lshl_add_u32", t1, t1, 3, sT[0])
    for ft in range(4):
        b.i("buffer_load_dwordx2", B1P.sub(2 * ft, 2), t1, sW1, 0, mods=f"offen offset:{32 * ft}")
    for j in (5, 6):
        b.i("s_add_u32", "m0", sMK, j * 8192)
        b.i("s_nop", 0)
        b.add(dma_k(0))
        b.add(dma_k(1))
        b.i("s_add_u32", "m0", sMV, j * 8192)
        b.i("s_nop", 0)
        b.add(dma_v(0))
        b.add(dma_v(1))
        b.i("s_add_u32", sTOFF, sTOFF, 8192)
    for n in range(8):
        b.add(k_read(0, n))
    for j in range(63, -1, -1):
        src = v(48 + 2 * j, 2)
        b.i("v_pk_mul_f32", src, src, sSC)
        if j < 63:
            pj = v(48 + 2 * (j + 1), 2)
            b.i("v_cvt_pk_bf16_f32", v(112 + j + 1), pj[0], pj[1])
    b.i("v_cvt_pk_bf16_f32", v(112), v(48), v(49))
    b.wait(lgkm=0)
    b.nop(2)
    qk_raw(b)
    M = [v(92 + i) for i in range(4)]
    T = [v(88 + i) for i in range(4)]
    b.nop(8)
    tile_max(b, M)
    xlane_op4(b, "v_max_f32", M, T)
    for qt in range(4):
        for r in range(4):
            b.i("v_mul_f32", NM[qt][r], -1.0, M[qt])
        b.i("v_mov_b32", L[qt], 0)


def h_epilogue(b):
    B1F = v(40, 16)
    srd_off(b, sH, pWS, H_OFF, H_SIZE)
    b.i("s_cmp_lt_u32", sHEAD, 27)
    b.i("s_cselect_b32", sH[2], H_SIZE, 0)
    b.i("s_lshl_b32", sT[0], sHEAD, 18)
    b.i("s_lshl_b32", sT[1], sT[2], 10)
    b.i("s_add_u32", sT[0], sT[0], sT[1])
    vst = v(22)
    b.i("v_and_b32", vst, 63, v(0))
    b.i("v_lshlrev_b32", vst, 4, vst)
    b.i("v_add_u32", vst, sT[0], vst)
    c1 = -2.0 * 1.4426950408889634 * 0.7978845608028654
    b.i("s_mov_b32", sC[1], 131072)
    b.i("s_mov_b32", sC[4], f2u(c1))
    b.i("s_mov_b32", sC[2], f2u(c1 * 0.044715))
    b.i("s_mov_b32", sC[3], f2u(c1 * 0.044715))
    pc3 = Reg("s", sC[2].idx, 2)
    b.wait(vm=8)
    for ft in range(4):
        lo16(b, B1F[4 * ft], B1P[2 * ft])
        hi16(b, B1F[4 * ft + 1], B1P[2 * ft])
        lo16(b, B1F[4 * ft + 2], B1P[2 * ft + 1])
        hi16(b, B1F[4 * ft + 3], B1P[2 * ft + 1])
    RV = [v(88 + 2 * i, 2) for i in range(4)]
    for qt in range(4):
        b.i("v_mov_b32", RV[qt][0], R2V[qt])
    C1 = v(104, 2)
    b.i("v_mov_b32", C1[0], sC[4])
    b.i("v_mov_b32", C1[1], sC[4])
    n = 0
    for c in range(2):
        for qt in range(4):
            U = v(56, 8)
            Wt = v(64, 8)
            pk = v(72 + 4 * (n & 3), 4)
            n += 1
            for h in range(4):
                ft, r = 2 * c + (h >> 1), 2 * (h & 1)
                b.i("v_pk_fma_f32", U.sub(2 * h, 2), HACC(qt, ft).sub(r, 2), RV[qt], B1F.sub(4 * ft + r, 2),
                    mods="op_sel_hi:[1,0,1]")
            for h in range(4):
                b.i("v_pk_mul_f32", Wt.sub(2 * h, 2), U.sub(2 * h, 2), U.sub(2 * h, 2))
            for h in range(4):
                b.i("v_pk_fma_f32", Wt.sub(2 * h, 2), Wt.sub(2 * h, 2), pc3, C1)
            for h in range(4):
                b.i("v_pk_mul_f32", Wt.sub(2 * h, 2), Wt.sub(2 * h, 2), U.sub(2 * h, 2))
            for e in range(8):
                b.i("v_exp_f32", Wt[e], Wt[e])
            for h in range(4):
                b.i("v_pk_add_f32", Wt.sub(2 * h, 2), Wt.sub(2 * h, 2), 1.0)
            for e in range(8):
                b.i("v_rcp_f32", Wt[e], Wt[e])
            for h in range(4):
                b.i("v_pk_mul_f32", U.sub(2 * h, 2), U.sub(2 * h, 2), Wt.sub(2 * h, 2))
            for h in range(4):
                b.i("v_cvt_pk_bf16_f32", pk[h], U[2 * h], U[2 * h + 1])
            b.i("buffer_store_dwordx4", pk, vst, sH, sC[1] if c else 0, mods=f"offen offset:{1024 * qt} sc1")


def after_mfma(blk, g, ins):
    n = -1
    for i, x in enumerate(blk.ins):
        if x.op.startswith("v_mfma"):
            n += 1
            if n == g:
                blk.ins[i + 1:i + 1] = ins
                return
    raise ValueError


def stamps_out(b):
    b.wait(vm=0, lgkm=0)
    srd_off(b, sMISC, pWS, 0x4000000, 1 << 20)
    b.i("s_lshl_b32", sT[0], s(2), 2)
    b.i("s_add_u32", sT[0], sT[0], sWAVE)
    b.i("s_lshl_b32", sT[0], sT[0], 6)
    b.i("v_mov_b32", v(1), sT[0])
    for k in range(len(STAMPS)):
        b.i("v_mov_b32", v(2), s(80 + 2 * k))
        b.i("buffer_store_dword", v(2), v(1), sMISC, 0, mods=f"offen offset:{4 * k}")
        b.nop(1)


def stamps_dbg(b):
    b.wait(vm=0, lgkm=0)
    ld_arg(b, s(66, 2), "dbg")
    b.wait(lgkm=0)
    srd(b, sMISC, s(66, 2), 256)
    b.i("s_cmp_eq_u32", s(2), 0)
    b.i("s_cselect_b32", sT[0], 0, OOB)
    b.i("s_cmp_eq_u32", s(2), 129)
    b.i("s_cselect_b32", sT[0], 32, sT[0])
    b.i("v_mov_b32", v(1), sT[0])
    b.i("v_mov_b32", v(3), OOB)
    b.i("v_cmp_eq_u32", "vcc", 0, v(0))
    b.nop(2)
    b.i("v_cndmask_b32", v(1), v(3), v(1), "vcc")
    for k in range(1, len(STAMPS)):
        b.i("s_sub_u32", sT[1], s(80 + 2 * k), s(80))
        b.i("v_mov_b32", v(2), sT[1])
        b.i("buffer_store_dword", v(2), v(1), sMISC, 0, mods=f"offen offset:{4 * k}")
        b.nop(1)


def build(names=(), thr=THR):
    STAMPS.clear()
    for i, n in enumerate(names):
        STAMPS[n] = i
    b = Block()
    tr = []
    pre = Block()
    setup(pre)
    b.add(pre)
    tr += pre.ins
    stamp(b, "pro0")
    b.label("K1_pro")
    steps = Block()
    for u in range(4):
        steps.add(K.pro_step(u))
    b.add(steps)
    b.i("s_cbranch_scc1", "K1_pro")
    tr += steps.ins * 5
    stamp(b, "proE")
    qe = Block()
    q_epilogue(qe)
    stamp(qe, "qE")
    P3.args(qe)
    h_epilogue(qe)
    qe.wait(lgkm=0)
    P3.addr(qe)
    if P3.TOUCH["w"]:
        P3.touch_w_addr(qe)
    flag_addr(qe, v(240))
    set_phase(qe, 2)
    qe.i("s_mov_b32", sMASK[0], -1)
    qe.i("s_mov_b32", sMASK[1], 0)
    qe.nop(2)
    stamp(qe, "hE")
    b.add(qe)
    tr += qe.ins
    it0 = A.iteration(0, g2=False, sm1_prev=False)
    b.add(it0)
    tr += it0.ins
    b.i("s_mov_b32", sCNT, 8)
    b.i("s_branch", "K1_u1")
    b.raw(".p2align 6")
    b.label("K1_loop")
    its = [A.iteration(u) for u in range(8)]
    k = next(i for i, x in enumerate(its[5].ins) if x.op.startswith("buffer_load"))
    its[5].ins.insert(k + 1, flag_store())
    k = next(i for i, x in enumerate(its[6].ins) if x.op.startswith("buffer_load"))
    its[6].ins.insert(k + 1, I("buffer_load_dword", vFT, vFP, sFLG, 0, mods="offen sc1"))
    if P3.TOUCH["w"]:
        op = P3.touch_w_open(sCNT)
        after_mfma(its[0], 20, op[0:1])
        after_mfma(its[0], 21, op[1:2])
        after_mfma(its[0], 22, op[2:3])
        for k, ld in enumerate(P3.touch_w_loads()):
            after_mfma(its[1], 19 + 4 * k, [ld])
    b.add(its[0])
    b.label("K1_u1")
    for u in range(1, 8):
        b.add(its[u])
        tr += its[u].ins
    for u in range(8):
        tr += its[u].ins
    b.i("s_sub_u32", sCNT, sCNT, 1)
    b.i("s_cmp_lg_u32", sCNT, 0)
    b.i("s_cbranch_scc1", "K1_loop")
    e = Block()
    stamp(e, "loopE")
    e.nop(1)
    K.tail(e)
    T4 = [v(88 + i) for i in range(4)]
    xlane_op4(e, "v_add_f32", L, T4)
    e.i("s_mov_b32", sT[0], f2u(thr))
    cc = [s(56 + 2 * i, 2) for i in range(4)]
    for i in range(4):
        e.i("v_cmp_nle_f32", cc[i], L[i], sT[0])
    e.nop(2)
    e.i("s_or_b64", cc[0], cc[0], cc[1])
    e.i("s_or_b64", cc[2], cc[2], cc[3])
    e.i("s_or_b64", cc[0], cc[0], cc[2])
    e.i("s_cmp_lg_u64", cc[0], 0)
    e.i("s_cselect_b32", sT[0], 1, 0)
    e.i("s_lshl_b32", sT[1], sWAVE, 2)
    e.i("v_mov_b32", T4[0], sT[0])
    e.i("v_mov_b32", T4[1], sT[1])
    e.i("v_add_u32", T4[1], 140 * 1024, T4[1])
    e.i("ds_write_b32", T4[1], T4[0])
    e.i("v_mov_b32", T4[1], 140 * 1024)
    e.wait(vm=0, lgkm=0)
    e.i("s_barrier")
    e.i("ds_read_b128", v(104, 4), T4[1])
    e.wait(lgkm=0)
    e.i("v_or3_b32", T4[0], v(104), v(105), v(106))
    e.i("v_or_b32", T4[0], T4[0], v(107))
    e.nop(1)
    e.i("v_readfirstlane_b32", sT[0], T4[0])
    e.i("s_cmp_lg_u32", sT[0], 0)
    e.i("s_cbranch_scc1", "K1_fb")
    e.label("K1_norm")
    poll_test(e, sMASK, 2)
    e.i("s_cbranch_scc1", "FZ_f2_ok")
    b.add(e)
    tr += e.ins
    sl = Block()
    poll_loop(sl, "FZ_f2", sMASK, 2)
    b.add(sl)
    oe = Block()
    K.o_epilogue(oe)
    stamp(oe, "oE")
    pb, ptr, info = P3.build(oe)
    b.add(pb)
    tr += ptr
    if STAMPS:
        (stamps_dbg if OPT.get("dbg") else stamps_out)(b)
    b.wait(vm=0)
    b.label("FZ_end")
    b.i("s_endpgm")
    K.fallback(b, t0=100, end_barrier=True)
    check(tr, "FZ")
    if OPT.get("verbose"):
        print(info)
    return b


def make(names=(), thr=THR):
    b = build(names, thr)
    return assemble_file([dict(label=NAME + "_kernel", grid=256, block=256, lds=163840, body=b.text(), nvgpr=512,
                               accum=256)])


if __name__ == "__main__":
    out = sys.argv[1]
    names = []
    thr = THR
    for x in sys.argv[2:]:
        if x.startswith("st="):
            names = x[3:].split(",")
        elif x == "fb":
            thr = -1.0
        elif x.startswith("nt="):
            for c in x[3:]:
                P3.TOUCH[c] = 0
        elif x == "dbg":
            OPT["dbg"] = 1
        elif x == "v":
            OPT["verbose"] = 1
    open(out, "w").write(make(names, thr))
```

```python
from asmgen import *

MF = "v_mfma_f32_16x16x32_bf16"
vKD0, vKD1, vVD0, vVD1 = v(1), v(2), v(3), v(4)
vKA = [v(5 + i) for i in range(4)]
vVA = [v(9 + i) for i in range(8)]
L = [v(17 + i) for i in range(4)]
NM = [v(24 + 4 * i, 4) for i in range(4)]
S = [[v(40 + (qt * 2 + kt) * 4, 4) for kt in range(2)] for qt in range(4)]
P = [v(72 + 4 * qt, 4) for qt in range(4)]
Q = [[v(112 + (qt * 4 + ks) * 4, 4) for ks in range(4)] for qt in range(4)]
O = [[a((dt * 4 + qt) * 4, 4) for qt in range(4)] for dt in range(8)]
KF = [[a(128 + (kt * 4 + ks) * 4, 4) for ks in range(4)] for kt in range(2)]
VF = [a(160 + dt * 4, 4) for dt in range(8)]
sKSRD, sVSRD = s(4, 4), s(8, 4)
sTOFF = s(36)
sMK, sMV = s(37), s(38)
KRING, VRING = 0, 65536


def mf_qk(qt, kt, ks):
    return I(MF, S[qt][kt], KF[kt][ks], Q[qt][ks], NM[qt] if ks == 0 else S[qt][kt])


def mf_pv(qt, dt):
    return I(MF, O[dt][qt], VF[dt], P[qt], O[dt][qt])


def v_read(slot, r):
    dt, x = r >> 1, r & 1
    return I("ds_read_b64_tr_b16", VF[dt].sub(2 * x, 2), vVA[dt], mods=f"offset:{slot * 8192 + x * 4096}")


def k_read(slot, n):
    kt, ks = n >> 2, n & 3
    return I("ds_read_b128", KF[kt][ks], vKA[ks], mods=f"offset:{slot * 8192 + kt * 4096}")


def dma_k(n):
    return I("buffer_load_dwordx4", (vKD0, vKD1)[n], sKSRD, sTOFF, mods=f"offen offset:{1024 * n} lds")


def dma_v(n):
    return I("buffer_load_dwordx4", (vVD0, vVD1)[n], sVSRD, sTOFF, mods=f"offen offset:{1024 * n} lds")


def sreg(h, e):
    return S[2 * h + (e >> 3)][(e >> 2) & 1][e & 3]


def sm_exp(h, e):
    return I("v_exp_f32", sreg(h, e), sreg(h, e))


def sm_add(h, e):
    qt = 2 * h + (e >> 3)
    return I("v_add_f32", L[qt], L[qt], sreg(h, e))


def sm_cvt(h, k):
    qt = 2 * h + (k >> 2)
    return I("v_cvt_pk_bf16_f32", P[qt][k & 3], sreg(h, 2 * k), sreg(h, 2 * k + 1))


def mfma_list(qk_order="tile", pv_order="qt"):
    out = []

    def qk(h):
        r = []
        for qt in (2 * h, 2 * h + 1):
            for kt in range(2):
                for ks in range(4):
                    r.append(mf_qk(qt, kt, ks))
        return r

    def pv(h):
        r = []
        if pv_order == "qt":
            for qt in (2 * h, 2 * h + 1):
                for dt in range(8):
                    r.append(mf_pv(qt, dt))
        else:
            for dt in range(8):
                for qt in (2 * h, 2 * h + 1):
                    r.append(mf_pv(qt, dt))
        return r
    return qk(0) + pv(1) + qk(1) + pv(0)


DEF = dict(
    e0=9, e1=41,
    pv_order="dt",
    vread_gaps=[18, 20, 22, 24, 26, 28, 30, 32, 34, 36, 38, 40, 42, 44, 46, 48],
    kread_gaps=[49, 50, 52, 54, 56, 58, 60, 62],
    lg_waits=[(3, 0), (47, 7), (55, 4)], last_wait=(63, 4),
    bar_gap=0, dma_gaps=[2, 6, 10, 14], vm=20, toff_gap=15,
    exp=True, ds=True, dma=True, bar=True, waits=True,
)


def iteration(u, opts=None, g2=True, sm1_prev=True, sm1_cur=True):
    o = dict(DEF)
    if opts:
        o.update(opts)
    N = 64
    mem = {g: [] for g in range(N)}
    sal = {g: [] for g in range(N)}
    val = {g: [] for g in range(N)}
    if o["exp"]:
        for h, g0 in ((0, o["e0"]), (1, o["e1"])):
            for e in range(16):
                ge = g0 + 2 * e
                cur = ge < N
                if not (h == 1 and not ((cur and sm1_cur) or (not cur and sm1_prev))):
                    val[ge % N].insert(0, sm_exp(h, e))
                ga = ge + 1
                cur = ga < N
                if h == 1 and not ((cur and sm1_cur) or (not cur and sm1_prev)):
                    continue
                val[ga % N].append(sm_add(h, e))
                if e & 1:
                    val[ga % N].append(sm_cvt(h, e >> 1))
    if o["ds"]:
        for r, g in enumerate(o["vread_gaps"]):
            mem[g].append(v_read(u, r))
        for n, g in enumerate(o["kread_gaps"]):
            mem[g % N].append(k_read((u + 1) % 8, n))
    if o["waits"] and o["ds"]:
        for g, cnt in o["lg_waits"]:
            sal[g].insert(0, W(lgkm=cnt))
        g, cnt = o["last_wait"]
        sal[g].insert(0, W(vm=o["vm"] if o["bar"] else None, lgkm=cnt))
    if o["bar"]:
        sal[o["bar_gap"]].append(I("s_barrier"))
    if o.get("xmem"):
        for g, (pre, me, post) in zip(o["dma_gaps"], o["xmem"]):
            sal[(g - 1) % N] += pre
            mem[g].insert(0, me)
            sal[g + 1] += post
    elif o["dma"]:
        g = o["dma_gaps"]
        sal[(g[0] - 1) % N].append(I("s_add_u32", "m0", sMK, ((u + 7) % 8) * 8192))
        mem[g[0]].insert(0, dma_k(0))
        mem[g[1]].insert(0, dma_k(1))
        sal[(g[2] - 1) % N].append(I("s_add_u32", "m0", sMV, ((u + 7) % 8) * 8192))
        mem[g[2]].insert(0, dma_v(0))
        mem[g[3]].insert(0, dma_v(1))
        sal[o["toff_gap"]].append(I("s_add_u32", sTOFF, sTOFF, 8192))
    b = Block()
    ml = mfma_list(pv_order=o["pv_order"])
    for g in range(N):
        if not (16 <= g < 32 and not g2):
            b.add(ml[g])
        else:
            b.add(I("s_nop", 0))
        b.add(sal[g])
        b.add(mem[g])
        b.add(val[g])
    return b


def addr_setup(b, vlane, vwave, tmp):
    t0, t1, t2, t3 = tmp[:4]
    b.i("v_lshrrev_b32", t0, 4, vlane)
    b.i("v_lshl_add_u32", t0, vwave, 3, t0)
    b.i("v_and_b32", t1, 15, vlane)
    for n, (kd, vd) in enumerate(((vKD0, vVD0), (vKD1, vVD1))):
        b.i("v_add_u32", t3, 4 * n, t0)
        b.i("v_and_b32", t2, 15, t3)
        b.i("v_xor_b32", t2, t1, t2)
        b.i("v_lshlrev_b32", t2, 4, t2)
        b.i("v_lshl_add_u32", kd, t0, 8, t2)
        b.i("v_and_b32", t2, 7, t3)
        b.i("v_lshlrev_b32", t2, 1, t2)
        b.i("v_xor_b32", t2, t1, t2)
        b.i("v_lshlrev_b32", t2, 4, t2)
        b.i("v_lshl_add_u32", vd, t0, 8, t2)
    b.i("v_lshrrev_b32", t0, 4, vlane)
    b.i("v_xor_b32", t2, t0, t1)
    b.i("v_lshlrev_b32", t2, 4, t2)
    b.i("v_lshl_add_u32", vKA[0], t1, 8, t2)
    for ks in range(1, 4):
        b.i("v_xor_b32", vKA[ks], 64 * ks, vKA[0])
    b.i("v_lshrrev_b32", t2, 2, t1)
    b.i("v_lshl_add_u32", t2, t0, 2, t2)
    b.i("v_and_b32", t3, 7, t2)
    b.i("v_lshlrev_b32", t3, 5, t3)
    b.i("v_lshl_add_u32", t3, t2, 8, t3)
    b.i("v_and_b32", t2, 3, t1)
    b.i("v_lshl_add_u32", t3, t2, 3, t3)
    b.i("v_add_u32", vVA[0], VRING, t3)
    for dt in range(1, 8):
        b.i("v_xor_b32", vVA[dt], 32 * dt, vVA[0])
```

```python
from layout import *
import attn16 as A
from attn16 import (MF, vKD0, vKD1, vVD0, vVD1, vKA, vVA, L, NM, S, P, Q, O, KF, VF, sKSRD, sVSRD, sTOFF, sMK, sMV,
                    dma_k, dma_v, k_read, v_read, mf_pv, sm_exp, sm_add, sm_cvt)

sWQ, sW1, sXN, sO, sH, sMISC = s(12, 4), s(16, 4), s(20, 4), s(24, 4), s(28, 4), s(32, 4)
sHEAD, sQB, sWAVE = s(39), s(40), s(41)
sWQo, sW1o, sXNo = s(44), s(45), s(46)
sMWQ, sMW1 = s(47), s(48)
sCNT = s(49)
sMKp, sMVp = s(50), s(51)
sSC = s(52, 2)
sT = [s(54), s(55), s(42), s(43)]
pX = s(64, 2)
pA, pB, pC, pD, pE, pF = s(66, 2), s(68, 2), s(70, 2), s(72, 2), s(74, 2), s(76, 2)
sC = [s(56 + i) for i in range(8)]
WRING = 114688
vWQD = [v(17), v(18)]
vW1D = v(19)
vXN = v(20)
vWQA = [v(21 + i) for i in range(4)]
vW1A = [v(25 + i) for i in range(4)]
vDUM = v(29)
QACC = lambda qt, ks, p: v(48 + (qt * 4 + ks) * 8 + 4 * p, 4)
HACC = lambda qt, ft: v(176 + (qt * 4 + ft) * 4, 4)
ABUF = [[a(128 + bf * 48 + f * 4, 4) for f in range(12)] for bf in range(2)]
BBUF = [[a(224 + qt * 4, 4) for qt in range(4)], [a(240 + qt * 4, 4) for qt in range(4)],
        [v(240 + qt * 4, 4) for qt in range(4)], [v(32 + qt * 4, 4) for qt in range(4)]]
THR = 2.0 ** 60
import os
OMODS = os.environ.get('OMODS', 'sc1')


def a_read(stage, buf, n):
    f, x = n >> 1, n & 1
    if f < 8:
        ks, p = f >> 1, f & 1
        return I("ds_read_b64_tr_b16", ABUF[buf][f].sub(2 * x, 2), vWQA[ks],
                 mods=f"offset:{stage * 12288 + 1024 * x + 8 * p}")
    ft = f - 8
    return I("ds_read_b64_tr_b16", ABUF[buf][f].sub(2 * x, 2), vW1A[ft], mods=f"offset:{stage * 12288 + 512 * x}")


def wq_dma(n):
    return I("buffer_load_dwordx4", vWQD[n], sWQ, sWQo, mods=f"offen offset:{1024 * n} lds")


def w1_dma():
    return I("buffer_load_dwordx4", vW1D, sW1, sW1o, mods="offen lds")


def xn_load(buf, qt):
    return I("buffer_load_dwordx4", BBUF[buf][qt], vXN, sXN, sXNo, mods=f"offen offset:{1024 * qt}")


def pro_mfma(buf_a, buf_b, g):
    f, qt = g >> 2, g & 3
    acc = QACC(qt, f >> 1, f & 1) if f < 8 else HACC(qt, f - 8)
    return I(MF, acc, ABUF[buf_a][f], BBUF[buf_b][qt], acc)


def pro_step(u):
    sal = {g: [] for g in range(48)}
    mem = {g: [] for g in range(48)}
    sal[0].append(I("s_barrier"))
    for n in range(24):
        mem[1 + n].append(a_read((u + 1) % 4, (u + 1) & 1, n))
    if u == 0:
        sal[25].append(I("s_mov_b32", "m0", sMKp))
    elif u == 2:
        sal[25].append(I("s_mov_b32", "m0", sMVp))
    else:
        sal[25].append(I("s_mov_b32", "m0", sMKp if u == 1 else sMVp))
    mem[26].append(dma_k(u) if u < 2 else dma_v(u - 2))
    sal[28].append(I("s_add_u32", "m0", sMWQ, u * 12288))
    mem[29].append(wq_dma(0))
    mem[31].append(wq_dma(1))
    sal[33].append(I("s_add_u32", "m0", sMW1, u * 12288))
    mem[34].append(w1_dma())
    for qt in range(4):
        mem[36 + 2 * qt].append(xn_load((u + 3) % 4, qt))
    sal[43].append(I("s_add_u32", sWQo, sWQo, 262144))
    sal[44].append(I("s_add_u32", sW1o, sW1o, 110592))
    sal[45].append(I("s_add_u32", sXNo, sXNo, 131072))
    if u == 3:
        sal[38].append(I("s_add_u32", sMKp, sMKp, 8192))
        sal[39].append(I("s_add_u32", sMVp, sMVp, 8192))
        sal[40].append(I("s_add_u32", sTOFF, sTOFF, 8192))
        sal[41].append(I("s_sub_u32", sCNT, sCNT, 1))
        sal[46].append(I("s_cmp_lg_u32", sCNT, 0))
    sal[47].append(W(vm=16, lgkm=0))
    b = Block()
    for g in range(48):
        b.add(pro_mfma(u & 1, u, g))
        b.add(sal[g])
        b.add(mem[g])
    return b


def xlane_op(b, op, r, t):
    b.i("v_mov_b32", t, r)
    b.nop(2)
    b.i("v_permlane32_swap_b32", r, t)
    b.nop(1)
    b.i(op, r, r, t)
    b.i("v_mov_b32", t, r)
    b.nop(2)
    b.i("v_permlane16_swap_b32", r, t)
    b.nop(1)
    b.i(op, r, r, t)


def xlane_op4(b, op, rs, ts):
    for swap in ("v_permlane32_swap_b32", "v_permlane16_swap_b32"):
        for r, t in zip(rs, ts):
            b.i("v_mov_b32", t, r)
        for r, t in zip(rs, ts):
            b.i(swap, r, t)
        for r, t in zip(rs, ts):
            b.i(op, r, r, t)


def qk_raw(b):
    for qt in range(4):
        for kt in range(2):
            for ks in range(4):
                b.i(MF, S[qt][kt], KF[kt][ks], Q[qt][ks], 0 if ks == 0 else S[qt][kt])


def tile_max(b, dst):
    for qt in range(4):
        s0, s1 = S[qt][0], S[qt][1]
        b.i("v_max3_f32", dst[qt], s0[0], s0[1], s0[2])
        b.i("v_max3_f32", dst[qt], dst[qt], s0[3], s1[0])
        b.i("v_max3_f32", dst[qt], dst[qt], s1[1], s1[2])
        b.i("v_max_f32", dst[qt], dst[qt], s1[3])


def stamp(b, n, on):
    if on:
        b.i("s_memrealtime", s(80 + 2 * n, 2))


def setup(b, on):
    ld_arg(b, pA, "k")
    ld_arg(b, pB, "v")
    ld_arg(b, pC, "wq")
    ld_arg(b, pD, "w1")
    ld_arg(b, pX, "ws")
    ld_arg(b, pE, "b1")
    b.i("s_cmp_ge_u32", s(2), 256)
    b.i("s_cbranch_scc1", "K1_end")
    stamp(b, 0, on)
    b.i("s_and_b32", sT[0], s(2), 7)
    b.i("s_lshl_b32", sT[0], sT[0], 2)
    b.i("s_bfe_u32", sT[1], s(2), 0x20003)
    b.i("s_add_u32", sHEAD, sT[0], sT[1])
    b.i("s_lshr_b32", sQB, s(2), 5)
    vl, vw, t0, t1, t2, t3 = v(200), v(201), v(202), v(203), v(204), v(205)
    b.i("v_and_b32", vl, 63, v(0))
    b.i("v_lshrrev_b32", vw, 6, v(0))
    b.i("s_nop", 0)
    b.i("v_readfirstlane_b32", sWAVE, vw)
    b.i("v_lshrrev_b32", t0, 4, vl)
    b.i("v_and_b32", t1, 15, vl)
    b.i("v_lshlrev_b32", t2, 2, t0)
    b.i("v_xor_b32", t2, t1, t2)
    b.i("v_lshlrev_b32", t2, 4, t2)
    b.i("v_lshl_add_u32", t3, vw, 3, t0)
    b.i("v_lshl_add_u32", t2, t3, 13, t2)
    b.i("s_lshl_b32", sT[0], sHEAD, 8)
    b.i("v_add_u32", vWQD[0], sT[0], t2)
    b.i("v_add_u32", vWQD[1], 4 * 8192 - 1024, vWQD[0])
    b.i("v_lshrrev_b32", t2, 3, vl)
    b.i("v_lshl_add_u32", t2, vw, 3, t2)
    b.i("v_mul_u32_u24", vW1D, 3456, t2)
    b.i("v_and_b32", t2, 1, t0)
    b.i("v_and_b32", t3, 1, vw)
    b.i("v_lshl_add_u32", t2, t3, 1, t2)
    b.i("v_lshlrev_b32", t2, 1, t2)
    b.i("v_and_b32", t3, 7, vl)
    b.i("v_xor_b32", t2, t2, t3)
    b.i("v_lshl_add_u32", vW1D, t2, 4, vW1D)
    b.i("s_lshl_b32", sT[0], sHEAD, 7)
    b.i("v_add_u32", vW1D, sT[0], vW1D)
    b.i("s_lshl_b32", sT[0], sQB, 4)
    b.i("s_lshl_b32", sT[1], sWAVE, 2)
    b.i("s_add_u32", sT[2], sT[0], sT[1])
    b.i("s_lshl_b32", sT[0], sT[2], 10)
    b.i("v_lshlrev_b32", vXN, 4, vl)
    b.i("v_add_u32", vXN, sT[0], vXN)
    b.wait(lgkm=0)
    srd(b, sWQ, pC, 640 * 8192)
    srd(b, sW1, pD, 640 * 3456)
    b.i("s_cmp_lt_u32", sHEAD, 27)
    b.i("s_cselect_b32", sW1[2], 640 * 3456, 0)
    srd_off(b, sXN, pX, XN_OFF, XN_SIZE)
    b.i("s_lshl_b32", sT[0], sWAVE, 11)
    b.i("s_add_u32", sMWQ, sT[0], WRING)
    b.i("s_mov_b32", sMK, sT[0])
    b.i("s_add_u32", sMV, sT[0], 65536)
    b.i("s_lshl_b32", sT[0], sWAVE, 10)
    b.i("s_add_u32", sMW1, sT[0], WRING + 8192)
    b.i("s_mov_b32", sWQo, 0)
    b.i("s_mov_b32", sW1o, 0)
    b.i("s_mov_b32", sXNo, 0)
    for st in range(4):
        if st == 3:
            b.i("buffer_load_dword", vDUM, vXN, sXN, 0, mods="offen")
        b.i("s_add_u32", "m0", sMWQ, st * 12288)
        b.i("s_nop", 0)
        b.add(wq_dma(0))
        b.add(wq_dma(1))
        b.i("s_add_u32", "m0", sMW1, st * 12288)
        b.i("s_add_u32", sWQo, sWQo, 262144)
        b.add(w1_dma())
        b.i("s_add_u32", sW1o, sW1o, 110592)
        if st >= 1:
            for qt in range(4):
                b.add(xn_load(st - 1, qt))
            b.i("s_add_u32", sXNo, sXNo, 131072)
    b.i("s_lshl_b32", sT[0], sHEAD, 19)
    srd_off(b, sKSRD, pA, sT[0], 524288)
    srd_off(b, sVSRD, pB, sT[0], 524288)
    A.addr_setup(b, vl, vw, [t0, t1, t2, t3])
    b.i("v_lshrrev_b32", t0, 4, vl)
    b.i("v_bfe_u32", t1, vl, 2, 2)
    b.i("v_and_b32", t2, 3, vl)
    b.i("v_lshl_add_u32", t3, t0, 3, t1)
    b.i("v_lshlrev_b32", vWQA[0], 8, t3)
    b.i("v_lshl_add_u32", vWQA[0], t1, 6, vWQA[0])
    b.i("v_lshl_add_u32", vWQA[0], t2, 4, vWQA[0])
    b.i("v_add_u32", vWQA[0], WRING, vWQA[0])
    for ks in range(1, 4):
        b.i("v_xor_b32", vWQA[ks], 64 * ks, vWQA[0])
    b.i("v_lshlrev_b32", vW1A[0], 7, t3)
    b.i("v_lshl_add_u32", vW1A[0], t2, 3, vW1A[0])
    b.i("v_lshrrev_b32", t1, 1, t1)
    b.i("v_and_b32", t0, 1, t0)
    b.i("v_lshl_add_u32", t1, t0, 1, t1)
    b.i("v_lshl_add_u32", vW1A[0], t1, 5, vW1A[0])
    b.i("v_add_u32", vW1A[0], WRING + 8192, vW1A[0])
    for ft in range(1, 4):
        b.i("v_xor_b32", vW1A[ft], 32 * ft, vW1A[0])
    b.i("s_mov_b32", sMKp, sMK)
    b.i("s_mov_b32", sMVp, sMV)
    b.i("s_mov_b32", sTOFF, 0)
    b.i("s_mov_b32", sCNT, 5)
    b.i("s_mov_b32", sSC[0], f2u(128 ** -0.5 * 1.4426950408889634))
    b.i("s_mov_b32", sSC[1], f2u(128 ** -0.5 * 1.4426950408889634))
    for r in range(48, 240):
        b.i("v_mov_b32", v(r), 0)
    for r in range(128):
        b.i("v_accvgpr_write_b32", a(r), 0)
    stamp(b, 1, on)
    b.wait(vm=22)
    b.i("s_barrier")
    for n in range(24):
        b.add(a_read(0, 0, n))
    b.wait(vm=15, lgkm=0)


def q_epilogue(b):
    for j in (5, 6):
        b.i("s_add_u32", "m0", sMK, j * 8192)
        b.i("s_nop", 0)
        b.add(dma_k(0))
        b.add(dma_k(1))
        b.i("s_add_u32", "m0", sMV, j * 8192)
        b.i("s_nop", 0)
        b.add(dma_v(0))
        b.add(dma_v(1))
        b.i("s_add_u32", sTOFF, sTOFF, 8192)
    for n in range(8):
        b.add(k_read(0, n))
    for j in range(63, -1, -1):
        src = v(48 + 2 * j, 2)
        b.i("v_pk_mul_f32", src, src, sSC)
        if j < 63:
            pj = v(48 + 2 * (j + 1), 2)
            b.i("v_cvt_pk_bf16_f32", v(112 + j + 1), pj[0], pj[1])
    b.i("v_cvt_pk_bf16_f32", v(112), v(48), v(49))
    b.wait(lgkm=0)
    b.nop(2)
    qk_raw(b)
    M = [v(92 + i) for i in range(4)]
    T = [v(88 + i) for i in range(4)]
    b.nop(8)
    tile_max(b, M)
    xlane_op4(b, "v_max_f32", M, T)
    for qt in range(4):
        for r in range(4):
            b.i("v_mul_f32", NM[qt][r], -1.0, M[qt])
        b.i("v_mov_b32", L[qt], 0)
    b.nop(2)


def tail(b):
    b.add(sm_add(1, 11))
    b.add(sm_cvt(1, 5))
    for e in range(12, 16):
        b.add(sm_exp(1, e))
    for e in range(12, 16):
        b.add(sm_add(1, e))
    b.add(sm_cvt(1, 6))
    b.add(sm_cvt(1, 7))
    b.nop(2)
    for dt in range(8):
        for qt in (2, 3):
            b.add(mf_pv(qt, dt))


RINV2 = [v(92 + i) for i in range(4)]
B1P = v(96, 8)
B1F = v(40, 16)


def tail_loads(b):
    vl, t0, t1 = v(88), v(89), v(90)
    b.i("v_and_b32", vl, 63, v(0))
    srd_off(b, sMISC, pX, R2_OFF, 8192)
    b.i("s_lshl_b32", sT[0], sT[2], 6)
    b.i("v_and_b32", t0, 15, vl)
    b.i("v_lshl_add_u32", t0, t0, 2, sT[0])
    for qt in range(4):
        b.i("buffer_load_dword", RINV2[qt], t0, sMISC, 0, mods=f"offen offset:{64 * qt}")
    srd(b, sW1, pE, 1728 * 2)
    b.i("s_lshl_b32", sT[0], sHEAD, 7)
    b.i("v_lshrrev_b32", t1, 4, vl)
    b.i("v_lshl_add_u32", t1, t1, 3, sT[0])
    for ft in range(4):
        b.i("buffer_load_dwordx2", B1P.sub(2 * ft, 2), t1, sW1, 0, mods=f"offen offset:{32 * ft}")


def o_head(b):
    RI = [v(24 + 2 * i) for i in range(4)]
    srd_off(b, sO, pX, O_OFF, O_SIZE)
    b.i("s_lshl_b32", sT[0], sHEAD, 19)
    b.i("s_lshl_b32", sT[1], sT[2], 10)
    b.i("s_add_u32", sT[0], sT[0], sT[1])
    vst = v(21)
    b.i("v_and_b32", vst, 63, v(0))
    b.i("v_lshlrev_b32", vst, 4, vst)
    b.i("v_add_u32", vst, sT[0], vst)
    for c in range(1, 4):
        b.i("s_mov_b32", sC[c], c * 131072)
    for qt in range(4):
        b.i("v_rcp_f32", RI[qt], L[qt])


def o_chunks():
    RI = [v(24 + 2 * i) for i in range(4)]
    vst = v(21)
    out = []
    n = 0
    for c in range(4):
        for qt in range(4):
            b = Block()
            w = v(40 + 8 * (n & 3), 8)
            pk = v(72 + 4 * (n & 3), 4)
            n += 1
            for t in range(2):
                for r in range(4):
                    b.i("v_accvgpr_read_b32", w[4 * t + r], O[2 * c + t][qt][r])
            rr = Reg("v", RI[qt].idx, 2)
            for h in range(4):
                b.i("v_pk_mul_f32", w.sub(2 * h, 2), w.sub(2 * h, 2), rr, mods="op_sel_hi:[1,0]")
            for h in range(4):
                b.i("v_cvt_pk_bf16_f32", pk[h], w[2 * h], w[2 * h + 1])
            b.i("buffer_store_dwordx4", pk, vst, sO, sC[c] if c else 0, mods=f"offen offset:{1024 * qt} {OMODS}")
            out.append(b.ins)
    return out


def o_epilogue(b):
    o_head(b)
    for ch in o_chunks():
        b.add(ch)


def h_epilogue(b):
    srd_off(b, sH, pX, H_OFF, H_SIZE)
    b.i("s_cmp_lt_u32", sHEAD, 27)
    b.i("s_cselect_b32", sH[2], H_SIZE, 0)
    b.i("s_lshl_b32", sT[0], sHEAD, 18)
    b.i("s_lshl_b32", sT[1], sT[2], 10)
    b.i("s_add_u32", sT[0], sT[0], sT[1])
    vst = v(22)
    b.i("v_and_b32", vst, 63, v(0))
    b.i("v_lshlrev_b32", vst, 4, vst)
    b.i("v_add_u32", vst, sT[0], vst)
    c1 = -2.0 * 1.4426950408889634 * 0.7978845608028654
    b.i("s_mov_b32", sC[4], f2u(c1))
    b.i("s_mov_b32", sC[5], f2u(c1))
    b.i("s_mov_b32", sC[6], f2u(c1 * 0.044715))
    b.i("s_mov_b32", sC[7], f2u(c1 * 0.044715))
    pc1, pc3 = Reg("s", sC[4].idx, 2), Reg("s", sC[6].idx, 2)
    b.wait(vm=16)
    for ft in range(4):
        lo16(b, B1F[4 * ft], B1P[2 * ft])
        hi16(b, B1F[4 * ft + 1], B1P[2 * ft])
        lo16(b, B1F[4 * ft + 2], B1P[2 * ft + 1])
        hi16(b, B1F[4 * ft + 3], B1P[2 * ft + 1])
    RV = [v(24 + 2 * i, 2) for i in range(4)]
    for qt in range(4):
        b.i("v_mov_b32", RV[qt][0], RINV2[qt])
    C1 = v(104, 2)
    b.i("v_mov_b32", C1[0], sC[4])
    b.i("v_mov_b32", C1[1], sC[4])
    n = 0
    for c in range(2):
        for qt in range(4):
            U = v(56, 8)
            Wt = v(64, 8)
            pk = v(72 + 4 * (n & 3), 4)
            n += 1
            for h in range(4):
                ft, r = 2 * c + (h >> 1), 2 * (h & 1)
                b.i("v_pk_fma_f32", U.sub(2 * h, 2), HACC(qt, ft).sub(r, 2), RV[qt], B1F.sub(4 * ft + r, 2),
                    mods="op_sel_hi:[1,0,1]")
            for h in range(4):
                b.i("v_pk_mul_f32", Wt.sub(2 * h, 2), U.sub(2 * h, 2), U.sub(2 * h, 2))
            for h in range(4):
                b.i("v_pk_fma_f32", Wt.sub(2 * h, 2), Wt.sub(2 * h, 2), pc3, C1)
            for h in range(4):
                b.i("v_pk_mul_f32", Wt.sub(2 * h, 2), Wt.sub(2 * h, 2), U.sub(2 * h, 2))
            for e in range(8):
                b.i("v_exp_f32", Wt[e], Wt[e])
            for h in range(4):
                b.i("v_pk_add_f32", Wt.sub(2 * h, 2), Wt.sub(2 * h, 2), 1.0)
            for e in range(8):
                b.i("v_rcp_f32", Wt[e], Wt[e])
            for h in range(4):
                b.i("v_pk_mul_f32", U.sub(2 * h, 2), U.sub(2 * h, 2), Wt.sub(2 * h, 2))
            for h in range(4):
                b.i("v_cvt_pk_bf16_f32", pk[h], U[2 * h], U[2 * h + 1])
            b.i("buffer_store_dwordx4", pk, vst, sH, sC[1] if c else 0, mods=f"offen offset:{1024 * qt} sc1")


def fallback(b, t0=105, end_barrier=False, post=None):
    M = [v(21), v(22), v(23), v(88)]
    TM = [v(89 + i) for i in range(3)] + [v(104)]
    T = [v(t0 + i) for i in range(4)]
    AL = [v(24 + i) for i in range(4)]
    b.label("K1_fb")
    for qt in range(4):
        b.i("v_mov_b32", M[qt], 0xFF800000)
        b.i("v_mov_b32", L[qt], 0)
    for r in range(128):
        b.i("v_accvgpr_write_b32", a(r), 0)
    b.i("s_mov_b32", sTOFF, 0)
    b.wait(vm=0, lgkm=0)
    b.label("K1_fb_loop")
    body = Block()
    body.i("s_barrier")
    body.i("s_mov_b32", "m0", sMK)
    body.i("s_nop", 0)
    body.add(dma_k(0))
    body.add(dma_k(1))
    body.i("s_mov_b32", "m0", sMV)
    body.i("s_nop", 0)
    body.add(dma_v(0))
    body.add(dma_v(1))
    body.wait(vm=0)
    body.i("s_barrier")
    for n in range(8):
        body.add(k_read(0, n))
    body.wait(lgkm=0)
    for r in range(16):
        body.add(v_read(0, r))
    qk_raw(body)
    body.nop(8)
    tile_max(body, TM)
    xlane_op4(body, "v_max_f32", TM, T)
    for qt in range(4):
        body.i("v_max_f32", TM[qt], TM[qt], M[qt])
    for qt in range(4):
        body.i("v_sub_f32", AL[qt], M[qt], TM[qt])
    for qt in range(4):
        body.i("v_exp_f32", AL[qt], AL[qt])
        body.i("v_mov_b32", M[qt], TM[qt])
    for qt in range(4):
        body.i("v_mul_f32", L[qt], L[qt], AL[qt])
    for h in range(2):
        for e in range(16):
            r = A.sreg(h, e)
            body.i("v_sub_f32", r, r, M[2 * h + (e >> 3)])
        for e in range(16):
            body.add(sm_exp(h, e))
        body.nop(1)
        for e in range(16):
            body.add(sm_add(h, e))
        for k in range(8):
            body.add(sm_cvt(h, k))
    for dt in range(8):
        for qt in range(4):
            for r in range(4):
                body.i("v_accvgpr_read_b32", T[r], O[dt][qt][r])
            for r in range(4):
                body.i("v_mul_f32", T[r], T[r], AL[qt])
            for r in range(4):
                body.i("v_accvgpr_write_b32", O[dt][qt][r], T[r])
    body.wait(lgkm=0)
    body.nop(2)
    for dt in range(8):
        for qt in range(4):
            body.add(mf_pv(qt, dt))
    body.i("s_add_u32", sTOFF, sTOFF, 8192)
    body.i("s_cmp_lt_u32", sTOFF, 524288)
    body.nop(8)
    check(body.ins + body.ins, "K1 fallback")
    b.add(body)
    b.i("s_cbranch_scc1", "K1_fb_loop")
    T4 = [v(88 + i) for i in range(4)]
    xlane_op4(b, "v_add_f32", L, T4)
    if end_barrier:
        b.i("s_barrier")
    if post:
        post(b)
    b.i("s_branch", "K1_norm")


def stamps_out(b, n):
    b.wait(vm=0, lgkm=0)
    srd_off(b, sMISC, pX, 0x4000000, 1 << 20)
    b.i("s_lshl_b32", sT[0], s(2), 2)
    b.i("s_add_u32", sT[0], sT[0], sWAVE)
    b.i("s_lshl_b32", sT[0], sT[0], 6)
    b.i("v_mov_b32", v(1), sT[0])
    for k in range(n):
        b.i("v_mov_b32", v(2), s(80 + 2 * k))
        b.i("buffer_store_dword", v(2), v(1), sMISC, 0, mods=f"offen offset:{4 * k}")
        b.nop(1)


def build(on=False, thr=THR):
    b = Block()
    tr = []
    pre = Block()
    setup(pre, on)
    b.add(pre)
    tr += pre.ins
    stamp(b, 2, on)
    b.label("K1_pro")
    steps = Block()
    for u in range(4):
        steps.add(pro_step(u))
    b.add(steps)
    b.i("s_cbranch_scc1", "K1_pro")
    tr += steps.ins * 5
    stamp(b, 3, on)
    qe = Block()
    q_epilogue(qe)
    b.add(qe)
    tr += qe.ins
    stamp(b, 4, on)
    it0 = A.iteration(0, g2=False, sm1_prev=False)
    b.add(it0)
    tr += it0.ins
    b.i("s_mov_b32", sCNT, 8)
    b.i("s_branch", "K1_u1")
    b.raw(".p2align 6")
    b.label("K1_loop")
    its = [A.iteration(u) for u in range(8)]
    b.add(its[0])
    b.label("K1_u1")
    for u in range(1, 8):
        b.add(its[u])
        tr += its[u].ins
    for u in range(8):
        tr += its[u].ins
    b.i("s_sub_u32", sCNT, sCNT, 1)
    b.i("s_cmp_lg_u32", sCNT, 0)
    b.i("s_cbranch_scc1", "K1_loop")
    stamp(b, 5, on)
    e = Block()
    tail_loads(e)
    tail(e)
    T4 = [v(88 + i) for i in range(4)]
    xlane_op4(e, "v_add_f32", L, T4)
    e.i("s_mov_b32", sT[0], f2u(thr))
    e.i("v_cmp_nle_f32", "vcc", L[0], sT[0]) if False else None
    e.i("v_max3_f32", T4[0], L[0], L[1], L[2])
    e.i("v_cmp_nle_f32", s(66, 2), L[0], sT[0])
    e.i("v_cmp_nle_f32", s(68, 2), L[1], sT[0])
    e.i("v_cmp_nle_f32", s(70, 2), L[2], sT[0])
    e.i("v_cmp_nle_f32", s(72, 2), L[3], sT[0])
    e.nop(2)
    e.i("s_or_b64", s(66, 2), s(66, 2), s(68, 2))
    e.i("s_or_b64", s(70, 2), s(70, 2), s(72, 2))
    e.i("s_or_b64", s(66, 2), s(66, 2), s(70, 2))
    e.i("s_cmp_lg_u64", s(66, 2), 0)
    e.i("s_cselect_b32", sT[0], 1, 0)
    e.i("s_lshl_b32", sT[1], sWAVE, 2)
    e.i("v_mov_b32", T4[0], sT[0])
    e.i("v_mov_b32", T4[1], sT[1])
    e.i("v_add_u32", T4[1], 140 * 1024, T4[1])
    e.i("ds_write_b32", T4[1], T4[0])
    e.i("v_mov_b32", T4[1], 140 * 1024)
    e.wait(lgkm=0)
    e.i("s_barrier")
    e.i("ds_read_b128", v(104, 4), T4[1])
    e.wait(lgkm=0)
    e.i("v_or3_b32", T4[0], v(104), v(105), v(106))
    e.i("v_or_b32", T4[0], T4[0], v(107))
    e.nop(1)
    e.i("v_readfirstlane_b32", sT[0], T4[0])
    e.i("s_cmp_lg_u32", sT[0], 0)
    e.i("s_cbranch_scc1", "K1_fb")
    e.label("K1_norm")
    e.nop(8)
    o_epilogue(e)
    stamp(e, 6, on)
    h_epilogue(e)
    stamp(e, 7, on)
    b.add(e)
    tr += e.ins
    if on:
        stamps_out(b, 8)
    b.wait(vm=0)
    b.label("K1_end")
    b.i("s_endpgm")
    fallback(b)
    check(tr, "K1")
    return b


if __name__ == "__main__":
    b = build()
    print(len(b.ins))
```

```python
from layout import *

MF = "v_mfma_f32_16x16x32_bf16"
R = 6
STG = 20480
NM_STEPS, NZ = 7, 23
sW, sB, sP, sX, sOUT, sMISC = s(4, 4), s(8, 4), s(12, 4), s(16, 4), s(20, 4), s(28, 4)
sWo, sBo, sM0 = s(36), s(37), s(38)
sZ, sPO, sROLE, sNT, sRT0 = s(44), s(45), s(46), s(47), s(48)
sMASK = s(50, 2)
sT = [s(54), s(55), s(42), s(43), s(49), s(53)]
pWO, pW2, pX, pOUT, pB2 = (s(66 + 2 * i, 2) for i in range(5))
vWD = [v(192 + j) for j in range(5)]
vB = [v(197), v(198)]
vA = [[v(199), v(200)], [v(201), v(202)], [v(213), v(214)]]
STB = [131072, 0, 65536, 20480, 65536 + 20480, 40960]
STG_GRP = [(2, 0), (0, 0), (1, 0), (0, 20480), (1, 20480), (0, 40960)]
sWe, sBe, sWoe, sBoe, sM0e = s(16, 4), s(20, 4), s(32), s(33), s(34)
vTH = v(215)
vP = v(203)
ACC0 = 112
ACC = lambda nt, qt: v(ACC0 + (qt * 10 + nt) * 4, 4)
NA = 8
AF = [a(160 + 4 * i, 4) for i in range(NA)]
BFB = [192, 208, 224, 240, 128, 144]
BF = [[[a(BFB[bf] + (ks * 2 + qt) * 4, 4) for qt in range(2)] for ks in range(2)] for bf in range(R)]
LOOK = 6
GAPS = [2, 6, 11, 15, 20, 24, 29, 33, 38]
BARG = 27
FU = 2
XO, CO, PO = [v(204 + j) for j in range(3)], [v(207 + j) for j in range(3)], [v(210 + j) for j in range(3)]
XV = [v(16 + 4 * j, 4) for j in range(3)]
BV = [v(28 + 4 * j, 4) for j in range(3)]
PV = [[v(40 + (j * 4 + k) * 4, 4) for k in range(4)] for j in range(3)]
GV = [v(216 + 8 * j, 8) for j in range(3)]
PKT = 96


def tag(i, t):
    i.note = t
    return i


def rd(stage, n, slot, x):
    ks, nt = divmod(n, 10)
    grp, so = STG_GRP[stage]
    off = so + ks * 10240 + x * 5120 + 32 * nt
    return I("ds_read_b64_tr_b16", AF[slot].sub(2 * x, 2), vA[grp][nt & 1], mods=f"offset:{off}")


def w_dma(j, early=False):
    return I("buffer_load_dwordx4", vWD[j], sWe if early else sW, sWoe if early else sWo,
             mods=f"offen offset:{1024 * (j & 3)} lds")


def b_load(buf, ks, qt, early=False):
    return I("buffer_load_dwordx4", BF[buf][ks][qt], vB[ks], sBe if early else sB, sBoe if early else sBo,
             mods=f"offen offset:{1024 * qt} sc1")


def prefetch_ops(st, early=False):
    m = sM0e if early else sM0
    ops = [(I("s_add_u32", "m0", m, STB[st]), w_dma(0, early))]
    ops += [(None, w_dma(1, early)), (None, w_dma(2, early)), (None, w_dma(3, early))]
    ops.append((I("s_add_u32", "m0", m, STB[st] + 4096), w_dma(4, early)))
    for ks in range(2):
        for qt in range(2):
            ops.append((None, b_load(st, ks, qt, early)))
    return ops


def early_regs(p):
    srd(p, sWe, pW2, 1728 * 1280)
    srd_off(p, sBe, pWS, H_OFF, H_SIZE)
    p.i("s_mul_i32", sWoe, sROLE, 7 * 81920)
    p.i("s_mul_i32", sBoe, sROLE, 14 * 131072)
    p.i("s_mul_i32", sM0e, sWAVE, 5120)


def early_ops():
    W, B = [], []
    for st in range(3):
        ops = [[[sc] if sc is not None else [], me, []] for sc, me in prefetch_ops(st, True)]
        ops[4][2] = [I("s_add_u32", sWoe, sWoe, 81920)]
        ops[8][2] = [I("s_add_u32", sBoe, sBoe, 262144)]
        W.append(ops[:5])
        B.append(ops[5:])
    th = [[], I("buffer_load_dword", vDUMMY, vTH, sBe, 0, mods="offen sc1"), []]
    seq = W[0] + B[0][:3] + [B[0][3]] + W[1] + W[2] + B[1] + B[2] + [th]
    assert len(seq) == 28
    return seq


def early_burst(p):
    early_regs(p)
    for pre, me, post in early_ops():
        for x in pre:
            p.add(x)
            p.i("s_nop", 0)
        p.add(me)
        for x in post:
            p.add(x)


def slot(u, n):
    return (20 * u + n) % NA


def vm_chain(name, table):
    vals = sorted(set(table.values()))
    out = []
    base = vals[0]
    for vv in vals[1:]:
        for z in sorted(z for z, x in table.items() if x == vv):
            out.append(I("s_cmp_eq_u32", sZ, z))
            out.append(I("s_cbranch_scc1", f"{name}_{vv}"))
    for vv in vals:
        if vv != base:
            out.append(Label(f"{name}_{vv}"))
        w = W(vm=min(vv, 63))
        w.note = f"vmw{vv}"
        out.append(w)
    return out


def step(u, vmtab):
    sal = {g: [] for g in range(40)}
    mem = {g: [] for g in range(40)}
    for n in range(20):
        m = n + LOOK
        st, mm = (u, m) if m < 20 else ((u + 1) % R, m - 20)
        for x in range(2):
            mem[2 * n + x].append(rd(st, mm, slot(u, m), x))
    for n in range(1, 21):
        sal[2 * n - 1].append(W(lgkm=2 * LOOK - 3))
    if u == 3:
        sal[0] += [I("s_cmp_eq_u32", sZ, 3),
                   I("s_cselect_b32", sW[0], pWO[0], sW[0]), I("s_cselect_b32", sW[1], pWO[1], sW[1]),
                   I("s_cselect_b32", sW[2], 4096 * 1280, sW[2]), I("s_cselect_b32", sWo, sT[4], sWo),
                   I("s_cselect_b32", sB[2], 0, sB[2])]
    if u == 1:
        sal[0] += [I("s_cmp_eq_u32", sZ, 19),
                   I("s_cselect_b32", sW[2], 0, sW[2]), I("s_cselect_b32", sB[2], 0, sB[2])]
    for (sc, me), g in zip(prefetch_ops((u + 4) % R), GAPS):
        if sc is not None:
            sal[g - 1].append(sc)
        mem[g].insert(0, me)
    sal[21].append(I("s_add_u32", sWo, sWo, 81920))
    sal[39].append(I("s_add_u32", sBo, sBo, 262144))
    sal[BARG] += vm_chain(f"P3w{u}", vmtab) + [I("s_barrier")]
    if u == FU:
        sal[30] += [I("s_cmp_ge_u32", sZ, 12 + FU), I("s_cselect_b32", s(3), 4, 3)]
        sal[31] += [I("s_add_u32", s(3), s(3), sNONCE)]
        mem[32].append(I("v_mov_b32", vFV, s(3)))
        mem[34].append(tag(flag_store(), "flag"))
    sal[36].append(I("s_add_u32", sZ, sZ, 1))
    b = Block()
    for g in range(40):
        n, qt = g >> 1, g & 1
        ks, nt = divmod(n, 10)
        b.add(I(MF, ACC(nt, qt), AF[slot(u, n)], BF[u][ks][qt], ACC(nt, qt)))
        b.add(sal[g])
        b.add(mem[g])
    return b


def store_partial(b, off_s, zero=False):
    n = 0
    for qt in range(2):
        for c in range(5):
            pk = v(PKT + 4 * (n % 3), 4)
            n += 1
            t0, t1 = ACC(2 * c, qt), ACC(2 * c + 1, qt)
            b.i("v_cvt_pk_bf16_f32", pk[0], t0[0], t0[1])
            b.i("v_cvt_pk_bf16_f32", pk[1], t0[2], t0[3])
            b.i("v_cvt_pk_bf16_f32", pk[2], t1[0], t1[1])
            b.i("v_cvt_pk_bf16_f32", pk[3], t1[2], t1[3])
            ch = qt * 5 + c
            b.i("s_add_u32", sT[0], off_s, ch * 4096)
            if zero:
                b.i("v_mov_b32", t0[0], 0)
            else:
                b.nop(1)
            b.i("v_permlane32_swap_b32", pk[0], pk[2])
            b.i("v_permlane32_swap_b32", pk[1], pk[3])
            if zero:
                b.i("v_mov_b32", t0[1], 0)
                b.i("v_mov_b32", t0[2], 0)
            else:
                b.nop(2)
            b.i("v_permlane16_swap_b32", pk[0], pk[2])
            b.i("v_permlane16_swap_b32", pk[1], pk[3])
            if zero:
                b.i("v_mov_b32", t0[3], 0)
            b.i("buffer_store_dwordx4", pk, vP, sP, sT[0], mods="offen sc1")
            if zero:
                for r in range(4):
                    b.i("v_mov_b32", t1[r], 0)


def args(b):
    ld_arg(b, pWO, "wo")
    ld_arg(b, pW2, "w2")
    ld_arg(b, pX, "x")
    ld_arg(b, pOUT, "out")
    ld_arg(b, pB2, "b2")


def addr(p):
    p.i("s_and_b32", sROLE, s(2), 3)
    p.i("s_bfe_u32", sT[0], s(2), 0x10002)
    p.i("s_bfe_u32", sNT, s(2), 0x20003)
    p.i("s_lshl_b32", sT[1], sQB, 1)
    p.i("s_add_u32", sT[0], sT[0], sT[1])
    p.i("s_lshl_b32", sRT0, sT[0], 3)
    vl, vw, t0, t1, t2, t3 = v(240), v(241), v(242), v(243), v(244), v(245)
    p.i("v_and_b32", vl, 63, v(0))
    p.i("v_lshrrev_b32", vw, 6, v(0))
    p.i("s_mul_i32", sT[1], sNT, 320)
    p.i("v_mul_u32_u24", t0, 320, vw)
    p.i("v_add_u32", t0, t0, vl)
    for j in range(5):
        p.i("v_add_u32", t1, 64 * j, t0)
        p.i("v_mul_u32_u24", t2, 52429, t1)
        p.i("v_lshrrev_b32", t2, 20, t2)
        p.i("v_mul_u32_u24", t3, 20, t2)
        p.i("v_sub_u32", t1, t1, t3)
        p.i("v_bfe_u32", t3, t2, 2, 1)
        p.i("v_lshlrev_b32", t3, 1, t3)
        p.i("v_xor_b32", t1, t1, t3)
        p.i("v_mul_u32_u24", t2, 1280, t2)
        p.i("v_lshl_add_u32", t2, t1, 4, t2)
        if j & 3:
            p.i("v_add_u32", t2, sT[1], t2)
            p.i("v_subrev_u32", vWD[j], 1024 * (j & 3), t2)
        else:
            p.i("v_add_u32", vWD[j], sT[1], t2)
    p.i("s_lshl_b32", sT[0], sWAVE, 1)
    p.i("s_add_u32", sT[0], sT[0], sRT0)
    p.i("s_lshl_b32", sT[0], sT[0], 10)
    p.i("v_lshlrev_b32", vB[0], 4, vl)
    p.i("v_add_u32", vB[0], sT[0], vB[0])
    p.i("v_add_u32", vB[1], 131072, vB[0])
    p.i("v_lshrrev_b32", t0, 4, vl)
    p.i("v_bfe_u32", t1, vl, 2, 2)
    p.i("v_lshl_add_u32", t1, t0, 2, t1)
    p.i("v_mul_u32_u24", t1, 320, t1)
    p.i("v_and_b32", t2, 3, vl)
    p.i("v_lshl_add_u32", t1, t2, 3, t1)
    p.i("v_and_b32", t0, 1, t0)
    p.i("v_lshlrev_b32", t0, 5, t0)
    p.i("v_add_u32", vA[0][0], t1, t0)
    p.i("v_sub_u32", vA[0][1], t1, t0)
    for g in (1, 2):
        p.i("v_add_u32", vA[g][0], 65536 * g, vA[0][0])
        p.i("v_add_u32", vA[g][1], 65536 * g, vA[0][1])
    p.i("v_lshlrev_b32", vP, 4, vl)
    early_regs(p)
    p.i("s_mul_i32", sT[0], sROLE, 14 * 131072)
    touch_act(p, None, 14, sT[0], dst=vTH)


def pf_burst(p, st):
    for sc, me in prefetch_ops(st):
        if sc is not None:
            p.add(sc)
            p.i("s_nop", 0)
        p.add(me)
    p.i("s_add_u32", sWo, sWo, 81920)
    p.i("s_add_u32", sBo, sBo, 262144)


def start_regs(p):
    srd(p, sW, pW2, 1728 * 1280)
    srd_off(p, sB, pWS, H_OFF, H_SIZE)
    p.i("s_mul_i32", sWo, sROLE, 7 * 81920)
    p.i("s_mul_i32", sBo, sROLE, 14 * 131072)
    p.i("s_add_u32", sWo, sWo, 3 * 81920)
    p.i("s_add_u32", sBo, sBo, 3 * 262144)
    p.i("s_mul_i32", sT[4], sROLE, 1024 * 1280)
    p.i("s_mul_i32", sM0, sWAVE, 5120)
    srd_off(p, sP, pWS, PS_OFF, 2 * 0xC00000)
    p.i("s_lshr_b32", sT[0], s(2), 2)
    p.i("s_lshl_b32", sT[0], sT[0], 2)
    p.i("s_add_u32", sT[0], sT[0], sWAVE)
    p.i("s_mul_i32", sT[0], sT[0], 40)
    p.i("s_add_u32", sT[0], sT[0], sROLE)
    p.i("s_lshl_b32", sPO, sT[0], 10)
    p.i("s_add_u32", sPO, sPO, PM_OFF - PS_OFF)
    p.i("s_lshl_b32", sT[0], sROLE, 1)
    p.i("s_lshl_b32", sMASK[0], 0x03030303, sT[0])
    p.i("s_mov_b32", sMASK[1], 0)


def pf_list(st, z):
    ops = [[sc, me, []] for sc, me in prefetch_ops(st)]
    for o in ops:
        o[1].vm = ("pf", z)
    ops[-1][2] = [I("s_add_u32", sWo, sWo, 81920), I("s_add_u32", sBo, sBo, 262144)]
    return ops


def merge_pre(p, chunks):
    for ch in chunks:
        ch[-1].vm = ("o", 0)
        p.add(ch)
    z = [I("v_mov_b32", v(r), 0) for r in range(ACC0, ACC0 + 80)]
    for k, (sc, me, tr_) in enumerate(pf_list(3, 3)):
        if sc is not None:
            p.add(sc)
        for x in z[9 * k:9 * k + 9] if k < 8 else z[72:]:
            p.add(x)
        p.add(me)
        for x in tr_:
            p.add(x)


TOUCH = dict(w=1, h=1, o=1)
vDUMMY = v(92)


def touch(b, srdreg, voff, n=1, stride=8192, sc1=False):
    for k in range(n):
        so = 0
        if k:
            b.i("s_mov_b32", s(3), k * stride)
            so = s(3)
        b.i("buffer_load_dword", vDUMMY, voff, srdreg, so, mods="offen" + (" sc1" if sc1 else ""))


sTW2, sTWO = s(28, 4), s(24, 4)
vTW = [v(93), v(94), v(95)]


def touch_w_addr(b):
    t0, t1 = v(240), v(241)
    role = sT[0]
    b.i("s_and_b32", role, s(2), 3)
    b.i("s_lshr_b32", sT[1], s(2), 3)
    b.i("s_lshl_b32", sT[1], sT[1], 2)
    b.i("s_add_u32", sT[1], sT[1], sWAVE)
    b.i("v_and_b32", t0, 63, v(0))
    b.i("v_mov_b32", t1, OOB)
    b.i("s_mul_i32", s(3), role, 7 * 81920)
    b.i("s_mul_i32", sT[4], sT[1], 35 * 128)
    b.i("s_add_u32", s(3), s(3), sT[4])
    b.i("v_cmp_gt_u32", "vcc", 35, t0)
    b.i("v_lshl_add_u32", vTW[0], t0, 7, s(3))
    srd(b, sTW2, pW2, 0)
    b.i("v_cndmask_b32", vTW[0], t1, vTW[0], "vcc")
    b.i("s_mul_i32", s(3), role, 1024 * 1280)
    b.i("s_mul_i32", sT[4], sT[1], 80 * 128)
    b.i("s_add_u32", s(3), s(3), sT[4])
    b.i("v_cmp_gt_u32", "vcc", 16, t0)
    b.i("v_lshl_add_u32", vTW[1], t0, 7, s(3))
    srd(b, sTWO, pWO, 0)
    b.i("v_add_u32", vTW[2], 8192, vTW[1])
    b.i("v_cndmask_b32", vTW[2], t1, vTW[2], "vcc")


def touch_w_open(cnt):
    return [I("s_cmp_eq_u32", cnt, 1), I("s_cselect_b32", sTW2[2], 1728 * 1280, 0),
            I("s_cselect_b32", sTWO[2], 4096 * 1280, 0)]


def touch_w_loads():
    return [I("buffer_load_dword", vDUMMY, vTW[0], sTW2, 0, mods="offen"),
            I("buffer_load_dword", vDUMMY, vTW[1], sTWO, 0, mods="offen"),
            I("buffer_load_dword", vDUMMY, vTW[2], sTWO, 0, mods="offen")]


def touch_act(b, srdreg, nk, kbase, dst=None):
    t0, t1, t2 = (v(93), v(94), v(95)) if dst is None else (v(240), v(241), v(242))
    per = nk * 16
    per = nk * 4
    b.i("s_lshl_b32", sT[1], sNT, 2)
    b.i("s_add_u32", sT[1], sT[1], sWAVE)
    b.i("s_mul_i32", sT[1], sT[1], per)
    b.i("v_and_b32", t0, 63, v(0))
    n = (per + 63) // 64
    for k in range(n):
        b.i("v_add_u32", t1, sT[1], t0)
        if k:
            b.i("v_add_u32", t1, 64 * k, t1)
        b.i("v_lshrrev_b32", t2, 6, t1)
        b.i("v_and_b32", t1, 63, t1)
        b.i("v_lshlrev_b32", t1, 7, t1)
        b.i("v_lshl_add_u32", t1, t2, 17, t1)
        b.i("s_lshl_b32", s(3), sRT0, 10)
        b.i("s_add_u32", s(3), s(3), kbase)
        b.i("v_add_u32", t1, s(3), t1)
        rem = per - 64 * k
        if rem < 64:
            b.i("v_cmp_gt_u32", "vcc", rem, t0)
            b.i("v_mov_b32", t2, OOB)
            b.nop(1)
            b.i("v_cndmask_b32", t1, t2, t1, "vcc")
        if dst is not None:
            assert n == 1
            b.i("v_mov_b32", dst, t1)
        else:
            touch(b, srdreg, t1, sc1=True)
    return n


def zero_acc(b):
    for r in range(ACC0, ACC0 + 80):
        b.i("v_mov_b32", v(r), 0)


def final_addr(e):
    vl, t0, t1 = v(240), v(241), v(242)
    e.i("v_and_b32", vl, 63, v(0))
    srd(e, sX, pX, 2048 * 1280)
    srd(e, sOUT, pOUT, 2048 * 1280)
    srd(e, sMISC, pB2, 1280)
    e.i("s_lshl_b32", sT[0], sRT0, 4)
    e.i("s_lshl_b32", sT[1], sROLE, 5)
    e.i("s_add_u32", sT[0], sT[0], sT[1])
    e.i("v_and_b32", t0, 15, vl)
    e.i("v_add_u32", t0, sT[0], t0)
    e.i("v_mul_u32_u24", t0, 1280, t0)
    e.i("v_lshrrev_b32", t1, 4, vl)
    e.i("v_lshlrev_b32", t1, 4, t1)
    e.i("s_mul_i32", sT[1], sNT, 320)
    e.i("v_add_u32", t1, sT[1], t1)
    e.i("s_and_b32", sT[2], s(2), 0xFC)
    e.i("s_add_u32", sT[2], sT[2], sROLE)
    e.i("s_mul_i32", sT[2], sT[2], 40 * 1024)
    for j in range(3):
        e.i("s_add_u32", sT[0], sWAVE, 4 * j)
        e.i("s_cmp_ge_u32", sT[0], 5)
        e.i("s_cselect_b32", sT[3], 16 * 1280, 0)
        e.i("s_cselect_b32", sT[4], 5, 0)
        e.i("s_sub_u32", sT[4], sT[0], sT[4])
        e.i("s_lshl_b32", sT[4], sT[4], 6)
        e.i("s_cmp_ge_u32", sT[0], 10)
        e.i("s_cselect_b32", sT[5], OOB, 0)
        e.i("s_add_u32", sT[4], sT[4], sT[5])
        e.i("v_add_u32", CO[j], sT[4], t1)
        e.i("v_add_u32", XO[j], sT[3], t0)
        e.i("v_add_u32", XO[j], XO[j], CO[j])
        e.i("s_lshl_b32", sT[0], sT[0], 12)
        e.i("s_add_u32", sT[0], sT[0], sT[2])
        e.i("s_add_u32", sT[0], sT[0], sT[5])
        e.i("v_lshlrev_b32", PO[j], 4, vl)
        e.i("v_add_u32", PO[j], sT[0], PO[j])


def tile_mask(b):
    b.i("s_and_b32", sT[0], s(2), 28)
    b.i("s_lshl_b32", sMASK[0], 15, sT[0])
    b.i("s_mov_b32", sMASK[1], 0)


def sum4(e, j, dst, tmp):
    for h in range(4):
        lo16(e, dst[2 * h], PV[j][0][h])
        hi16(e, dst[2 * h + 1], PV[j][0][h])
    for k in range(1, 4):
        for h in range(4):
            lo16(e, tmp[2 * h], PV[j][k][h])
            hi16(e, tmp[2 * h + 1], PV[j][k][h])
        for h in range(4):
            e.i("v_pk_add_f32", dst.sub(2 * h, 2), dst.sub(2 * h, 2), tmp.sub(2 * h, 2))


def build(head, chunks):
    p = Block()
    p.add(head)
    start_regs(p)
    merge_pre(p, chunks)
    stamp(p, "p3s")
    p.i("s_mov_b32", sZ, 0)
    seq = [getattr(x, "vm", ("x", 0)) for x in p.ins if x.op.startswith("buffer_")]
    waits = {}
    w_pre = 0
    side_w = {}
    for z in range(NZ):
        if z == 4:
            seq.append(("poll3", 0))
        if z == 5:
            side_w[5] = len(seq) - seq.index(("poll3", 0)) - 1
            seq += [("pf", 7)] * 4 + [("pf", 8)] * 4
            if TOUCH["o"]:
                seq += [("t", 0)] * 2
        if z == 18:
            seq.append(("poll4", 0))
        if z == 19:
            side_w[19] = len(seq) - seq.index(("poll4", 0)) - 1
            seq += [("fin", 0)] * 18
        k = 0
        evs = sorted([(g, "pf", i) for i, g in enumerate(GAPS)] + ([(34, "flag", 0)] if z % R == FU else []) +
                     [(BARG - 0.5, "wait", 0)])
        for g, kind, i in evs:
            if kind == "pf":
                dummy = (i >= 5 and z in (3, 4))
                seq.append(("dummy", 0) if dummy else ("pf", z + 4))
            elif kind == "flag":
                seq.append(("flag", z))
            else:
                need = [i2 for i2, t in enumerate(seq) if t == ("pf", z + 1)]
                waits[z] = (len(seq) - max(need) - 1 if need else 63) if z + 1 < NZ else 24
                if z == 12 + FU:
                    lastm = max(i2 for i2, t in enumerate(seq) if t[0] == "mst")
                    waits[z] = min(waits[z], len(seq) - lastm - 1)
                if z == FU:
                    lasto = max(i2 for i2, t in enumerate(seq) if t[0] == "o")
                    waits[z] = min(waits[z], len(seq) - lasto - 1)
        if z == NM_STEPS - 1:
            seq += [("mst", 0)] * 10
    waits = {z: min(w, 63) for z, w in waits.items()}
    tabs = {u: {z: waits[z] for z in range(NZ) if z % R == u} for u in range(R)}
    steps = [step(u, tabs[u]) for u in range(R)]

    b = Block()
    tr = []
    stamp(p, "oflag")
    for n in range(LOOK):
        for x in range(2):
            p.add(rd(0, n, slot(0, n), x))
    p.wait(lgkm=2 * (LOOK - 1))
    stamp(p, "p3first")
    b.add(p)
    tr += p.ins

    side = {}
    x = Block()
    poll_load(x, sMASK)
    side[4] = (x, x.ins)
    x = Block()
    x.wait(vm=side_w[5])
    poll_test(x, sMASK, 3)
    x.i("s_cbranch_scc1", "P3_opoll_ok")
    sl = Block()
    poll_loop(sl, "P3_opoll", sMASK, 3)
    y = Block()
    srd_off(y, sB, pWS, O_OFF, O_SIZE)
    y.i("s_mul_i32", sBo, sROLE, 32 * 131072)
    for st in (7 % R, 8 % R):
        for ks in range(2):
            for qt in range(2):
                y.add(b_load(st, ks, qt))
        y.i("s_add_u32", sBo, sBo, 262144)
    if TOUCH["o"]:
        y.i("s_mul_i32", sT[0], sROLE, 32 * 131072)
        touch_act(y, sB, 32, sT[0])
    tile_mask(y)
    full = Block()
    full.add(x)
    full.add(sl)
    full.add(y)
    side[5] = (full, x.ins + y.ins)
    x = Block()
    poll_load(x, sMASK)
    side[18] = (x, x.ins)
    x = Block()
    x.wait(vm=side_w[19])
    poll_test(x, sMASK, 4)
    x.i("s_cbranch_scc1", "P3_mpoll_ok")
    sl = Block()
    poll_loop(sl, "P3_mpoll", sMASK, 4)
    y = Block()
    final_addr(y)
    y.i("s_mov_b32", sT[4], PM_OFF - PS_OFF)
    for j in range(3):
        for k in range(4):
            y.i("buffer_load_dwordx4", PV[j][k], PO[j], sP, sT[4], mods=f"offen offset:{1024 * k} sc1")
        y.i("buffer_load_dwordx4", XV[j], XO[j], sX, 0, mods="offen")
        y.i("buffer_load_dwordx4", BV[j], CO[j], sMISC, 0, mods="offen")
    full = Block()
    full.add(x)
    full.add(sl)
    full.add(y)
    side[19] = (full, x.ins + y.ins)

    bound = Block()
    bound.nop(8)
    store_partial(bound, sPO, zero=True)
    bound.i("s_sub_u32", sPO, sPO, PM_OFF - PS_OFF)
    bound.nop(2)
    stamp(bound, "mE")

    b.label("P3_loop")
    for u in range(R):
        for z in side:
            if z % R == u:
                b.i("s_cmp_eq_u32", sZ, z)
                b.i("s_cbranch_scc1", f"P3_side{z}")
        b.label(f"P3_u{u}")
        b.add(steps[u])
        if u == (NM_STEPS - 1) % R:
            b.i("s_cmp_eq_u32", sZ, NM_STEPS)
            b.i("s_cbranch_scc1", "P3_bound")
        if u == (NZ - 1) % R:
            b.i("s_cmp_eq_u32", sZ, NZ)
            b.i("s_cbranch_scc1", "P3_fin")
        if u < R - 1:
            b.label(f"P3_t{u + 1}")
    b.i("s_branch", "P3_loop")
    b.label("P3_bound")
    b.add(bound)
    b.i("s_branch", f"P3_t{NM_STEPS % R}")
    for z, (full, _) in side.items():
        b.label(f"P3_side{z}")
        b.add(full)
        b.i("s_branch", f"P3_u{z % R}")
    for z in range(NZ):
        if z in side:
            tr += side[z][1]
        wz = waits[z]
        for ins in steps[z % R].ins:
            nt_ = getattr(ins, "note", "")
            if nt_.startswith("vmw") and int(nt_[3:]) < wz:
                continue
            tr.append(ins)
        if z == NM_STEPS - 1:
            tr += bound.ins

    b.label("P3_fin")
    e = Block()
    stamp(e, "sE")
    e.nop(8)
    store_partial(e, sPO)
    e.wait(vm=10)
    e.i("s_mov_b32", sT[0], f2u(-1.4426950408889634))
    tmp, EE = v(240, 8), v(248, 8)
    for j in range(3):
        G = GV[j]
        sum4(e, j, G, tmp)
        for h in range(4):
            lo16(e, tmp[2 * h], BV[j][h])
            hi16(e, tmp[2 * h + 1], BV[j][h])
        for h in range(4):
            e.i("v_pk_add_f32", G.sub(2 * h, 2), G.sub(2 * h, 2), tmp.sub(2 * h, 2))
        for q in range(8):
            e.i("v_mul_f32", EE[q], sT[0], G[q])
        for q in range(8):
            e.i("v_exp_f32", EE[q], EE[q])
        for h in range(4):
            e.i("v_pk_add_f32", EE.sub(2 * h, 2), EE.sub(2 * h, 2), 1.0)
        for q in range(8):
            e.i("v_rcp_f32", EE[q], EE[q])
        e.nop(1)
        for h in range(4):
            e.i("v_pk_mul_f32", G.sub(2 * h, 2), G.sub(2 * h, 2), EE.sub(2 * h, 2))
    set_phase(e, 5)
    e.wait(vm=0)
    e.i("s_barrier")
    e.add(flag_store())
    stamp(e, "gE")
    poll_loop(e, "P3_spoll", sMASK, 5)
    stamp(e, "polled")
    for j in range(3):
        for k in range(4):
            e.i("buffer_load_dwordx4", PV[j][k], PO[j], sP, 0, mods=f"offen offset:{1024 * k} sc1")
    SS = v(96, 8)
    for j in range(3):
        e.wait(vm=4 * (2 - j) + j)
        sum4(e, j, SS, tmp)
        for h in range(4):
            lo16(e, tmp[2 * h], XV[j][h])
            hi16(e, tmp[2 * h + 1], XV[j][h])
        for h in range(4):
            e.i("v_pk_fma_f32", SS.sub(2 * h, 2), SS.sub(2 * h, 2), GV[j].sub(2 * h, 2), tmp.sub(2 * h, 2))
        for h in range(4):
            e.i("v_cvt_pk_bf16_f32", XV[j][h], SS[2 * h], SS[2 * h + 1])
        e.i("buffer_store_dwordx4", XV[j], XO[j], sOUT, 0, mods="offen")
    stamp(e, "end")
    b.add(e)
    tr += [x for x in e.ins]
    return b, tr, dict(waits=waits, side=side_w, pre=w_pre)
```

```python
import sys
from layout import *
import layout as LY
from common import assemble_file, NAME
import k1 as K
import p3 as P3
import attn16 as A
from attn16 import (MF, L, NM, S, P, Q, O, KF, VF, sKSRD, sVSRD, sTOFF, sMK, sMV, dma_k, dma_v, k_read)
from k1 import (sWQ, sW1, sXN, sO, sH, sMISC, sWQo, sW1o, sXNo, sMWQ, sMW1, sCNT, sMKp, sMVp, sSC, sT, pA, pB, pC, pD,
                pE, pF, sC, WRING, vWQD, vW1D, vXN, vWQA, vW1A, vDUM, HACC, BBUF, a_read, wq_dma, w1_dma,
                qk_raw, tile_max, xlane_op4, THR)

OPT = dict()
TQ = dict(on=1)
pXin = s(76, 2)
pDBG = s(62, 2)
sMASK = P3.sMASK


def xn_load(buf, qt):
    return I("buffer_load_dwordx4", BBUF[buf][qt], vXN, sXN, sXNo, mods=f"offen offset:{1024 * qt} sc1")


K.xn_load = xn_load


def layernorm(b, vst, vrow, vj):
    X, PK = v(32, 40), v(72, 20)
    acc, mean, tmp, mb, den, d, var = v(92, 2), v(94), v(95), v(96), v(98), v(100, 2), v(108)
    cM, cE = sC[0], sC[1]
    b.i("s_mov_b32", cM, f2u(1.0 / 640.0))
    b.i("s_mov_b32", cE, f2u(1e-5))
    for t in range(1, 5):
        b.i("s_mov_b32", sC[1 + t], t * 524288)

    def denom(dst):
        bf16_round(b, dst, tmp)
        b.i("v_add_f32", dst, cE, dst)
        bf16_round(b, dst, tmp)
        b.i("v_sqrt_f32", dst, dst)
        b.nop(1)
        bf16_round(b, dst, tmp)

    b.wait(vm=9)
    stamp(b, "xin")
    for r in range(20):
        lo16(b, X[2 * r], PK[r])
        hi16(b, X[2 * r + 1], PK[r])
    acc2 = v(104, 2)
    b.i("v_pk_add_f32", acc, X.sub(0, 2), X.sub(4, 2))
    b.i("v_pk_add_f32", acc2, X.sub(2, 2), X.sub(6, 2))
    for r in range(4, 20):
        t = acc2 if r & 1 else acc
        b.i("v_pk_add_f32", t, t, X.sub(2 * r, 2))
    b.i("v_pk_add_f32", acc, acc, acc2)
    b.i("v_add_f32", mean, acc[0], acc[1])
    dpp_row_sum(b, mean)
    b.i("v_mul_f32", mean, cM, mean)
    mm = Reg("v", mean.idx, 2)
    d2 = v(102, 2) if False else v(110, 2)
    for r in range(20):
        dd_, t = (d2, acc2) if r & 1 else (d, acc)
        b.i("v_pk_add_f32", dd_, X.sub(2 * r, 2), mm, mods="op_sel_hi:[1,0] neg_lo:[0,1] neg_hi:[0,1]")
        if r < 2:
            b.i("v_pk_mul_f32", t, dd_, dd_)
        else:
            b.i("v_pk_fma_f32", t, dd_, dd_, t)
    b.i("v_pk_add_f32", acc, acc, acc2)
    b.i("v_add_f32", den, acc[0], acc[1])
    dpp_row_sum(b, den)
    b.i("v_mul_f32", den, cM, den)
    b.i("v_mov_b32", var, den)
    b.i("v_mov_b32", mb, mean)
    bf16_round(b, mb, tmp)
    denom(den)
    b.i("v_rcp_f32", den, den)
    mm = Reg("v", mb.idx, 2)
    dd = Reg("v", den.idx, 2)
    tm2 = v(109)
    for r in range(0, 20, 2):
        prs = ((d, tmp, r), (d2, tm2, r + 1))
        for dx, tx, rr in prs:
            b.i("v_pk_add_f32", dx, X.sub(2 * rr, 2), mm, mods="op_sel_hi:[1,0] neg_lo:[0,1] neg_hi:[0,1]")
        for dx, tx, rr in prs:
            b.i("v_cvt_pk_bf16_f32", tx, dx[0], dx[1])
        for dx, tx, rr in prs:
            lo16(b, dx[0], tx)
            hi16(b, dx[1], tx)
        for dx, tx, rr in prs:
            b.i("v_pk_mul_f32", dx, dx, dd, mods="op_sel_hi:[1,0]")
        for dx, tx, rr in prs:
            b.i("v_cvt_pk_bf16_f32", PK[rr], dx[0], dx[1])
        if (r + 2) % 4 == 0:
            t = (r + 2) // 4 - 1
            b.i("buffer_store_dwordx4", PK.sub(4 * t, 4), vst, sXN, sC[1 + t] if t else 0, mods="offen sc1")
    b.i("v_mul_f32", var, var, den)
    b.i("v_mul_f32", var, var, den)
    denom(var)
    b.i("v_rcp_f32", var, var)
    srd_off(b, sMISC, pWS, R2_OFF, 8192)
    b.i("v_cmp_eq_u32", "vcc", 0, vj)
    b.i("v_lshlrev_b32", vrow, 2, vrow)
    b.i("v_mov_b32", tmp, OOB)
    b.i("v_cndmask_b32", vrow, tmp, vrow, "vcc")
    b.i("buffer_store_dword", var, vrow, sMISC, 0, mods="offen sc1")


def setup(b):
    ld_arg(b, pXin, "x")
    ld_arg(b, pWS, "ws")
    ld_arg(b, pDBG, "dbg")
    ld_arg(b, pC, "wq")
    ld_arg(b, pD, "w1")
    ld_arg(b, pA, "k")
    ld_arg(b, pB, "v")
    ld_arg(b, pE, "b1")
    b.i("s_memrealtime", s(100, 2))
    b.i("s_cmp_ge_u32", s(2), 256)
    b.i("s_cbranch_scc1", "FZ_end")
    stamp(b, "start")
    b.i("s_and_b32", sT[0], s(2), 7)
    b.i("s_lshl_b32", sT[0], sT[0], 2)
    b.i("s_bfe_u32", sT[1], s(2), 0x20003)
    b.i("s_add_u32", sHEAD, sT[0], sT[1])
    b.i("s_lshr_b32", sQB, s(2), 5)
    vl, vw, t0, t1, t2, t3 = v(200), v(201), v(202), v(203), v(204), v(205)
    b.i("v_and_b32", vl, 63, v(0))
    b.i("v_lshrrev_b32", vw, 6, v(0))
    vld, vst, vrow, vj = v(102), v(103), v(106), v(107)
    b.i("v_lshrrev_b32", vrow, 4, v(0))
    b.i("v_readfirstlane_b32", sWAVE, vw)
    b.i("s_lshl_b32", s(3), s(2), 3)
    b.i("v_add_u32", vrow, s(3), vrow)
    b.i("v_and_b32", vj, 15, v(0))
    b.i("v_mul_u32_u24", vld, 1280, vrow)
    b.i("v_lshl_add_u32", vld, vj, 4, vld)
    b.i("s_lshl_b32", sT[0], sQB, 5)
    b.i("s_and_b32", sT[1], s(2), 31)
    b.i("s_cmp_eq_u32", sT[1], 0)
    b.i("s_cselect_b32", sT[1], sT[0], OOB)
    b.i("v_mov_b32", t0, OOB)
    b.i("v_mov_b32", t1, sT[1])
    b.i("v_cmp_eq_u32", "vcc", 0, v(0))
    b.wait(lgkm=0)
    b.nop(2)
    b.i("v_cndmask_b32", t0, t0, t1, "vcc")
    b.i("s_and_b32", s(100), s(100), 0x7FFFFFF8)
    b.i("s_or_b32", s(100), s(100), 0x80000000)
    srd(b, sMISC, pDBG, 256)
    b.i("v_mov_b32", t1, s(100))
    b.i("buffer_store_dword", t1, t0, sMISC, 0, mods="offen sc1")
    PK = v(72, 20)
    srd(b, sO, pXin, 2048 * 1280)
    b.i("s_cmp_ge_u32", sWAVE, 2)
    b.i("s_cbranch_scc1", "FZ_nox")
    for t in range(5):
        b.i("buffer_load_dwordx4", PK.sub(4 * t, 4), vld, sO, 0, mods=f"offen offset:{256 * t}")
    b.label("FZ_nox")
    b.i("v_lshrrev_b32", t0, 4, vl)
    b.i("v_and_b32", t1, 15, vl)
    b.i("v_lshlrev_b32", t2, 2, t0)
    b.i("v_xor_b32", t2, t1, t2)
    b.i("v_lshlrev_b32", t2, 4, t2)
    b.i("v_lshl_add_u32", t3, vw, 3, t0)
    b.i("v_lshl_add_u32", t2, t3, 13, t2)
    b.i("s_lshl_b32", sT[0], sHEAD, 8)
    b.i("v_add_u32", vWQD[0], sT[0], t2)
    b.i("v_add_u32", vWQD[1], 4 * 8192 - 1024, vWQD[0])
    b.i("v_lshrrev_b32", t2, 3, vl)
    b.i("v_lshl_add_u32", t2, vw, 3, t2)
    b.i("v_mul_u32_u24", vW1D, 3456, t2)
    b.i("v_and_b32", t2, 1, t0)
    b.i("v_and_b32", t3, 1, vw)
    b.i("v_lshl_add_u32", t2, t3, 1, t2)
    b.i("v_lshlrev_b32", t2, 1, t2)
    b.i("v_and_b32", t3, 7, vl)
    b.i("v_xor_b32", t2, t2, t3)
    b.i("v_lshl_add_u32", vW1D, t2, 4, vW1D)
    b.i("s_lshl_b32", sT[0], sHEAD, 7)
    b.i("v_add_u32", vW1D, sT[0], vW1D)
    srd(b, sWQ, pC, 640 * 8192)
    srd(b, sW1, pD, 640 * 3456)
    b.i("s_cmp_lt_u32", sHEAD, 27)
    b.i("s_cselect_b32", sW1[2], 640 * 3456, 0)
    b.i("s_lshl_b32", sT[0], sWAVE, 11)
    b.i("s_add_u32", sMWQ, sT[0], WRING)
    b.i("s_mov_b32", sMK, sT[0])
    b.i("s_add_u32", sMV, sT[0], 65536)
    b.i("s_lshl_b32", sT[0], sWAVE, 10)
    b.i("s_add_u32", sMW1, sT[0], WRING + 8192)
    b.i("s_mov_b32", sWQo, 0)
    b.i("s_mov_b32", sW1o, 0)
    b.i("s_mov_b32", sXNo, 0)

    def wfill(st):
        b.i("s_add_u32", "m0", sMWQ, st * 12288)
        b.i("s_nop", 0)
        b.add(wq_dma(0))
        b.add(wq_dma(1))
        b.i("s_add_u32", "m0", sMW1, st * 12288)
        b.i("s_add_u32", sWQo, sWQo, 262144)
        b.add(w1_dma())
        b.i("s_add_u32", sW1o, sW1o, 110592)
    for st in range(3):
        wfill(st)
    b.i("s_lshl_b32", sT[0], sQB, 4)
    b.i("s_lshl_b32", sT[1], sWAVE, 2)
    b.i("s_add_u32", sT[2], sT[0], sT[1])
    b.i("s_lshl_b32", sT[0], sT[2], 10)
    b.i("v_lshlrev_b32", vXN, 4, vl)
    b.i("v_add_u32", vXN, sT[0], vXN)
    srd_off(b, sXN, pWS, XN_OFF, XN_SIZE)
    srd_off(b, sFLG, pWS, FLAG_OFF, FLAG_SIZE)
    b.i("v_lshrrev_b32", t0, 2, vj)
    b.i("v_lshlrev_b32", vst, 17, t0)
    b.i("v_lshrrev_b32", t0, 4, vrow)
    b.i("v_lshl_add_u32", vst, t0, 10, vst)
    b.i("v_and_b32", t0, 3, vj)
    b.i("v_lshl_add_u32", vst, t0, 8, vst)
    b.i("v_and_b32", t0, 15, vrow)
    b.i("v_lshl_add_u32", vst, t0, 4, vst)

    def rest():
        b.i("s_lshl_b32", sT[0], sHEAD, 19)
        srd_off(b, sKSRD, pA, sT[0], 524288)
        srd_off(b, sVSRD, pB, sT[0], 524288)
        A.addr_setup(b, vl, vw, [t0, t1, t2, t3])
        b.i("v_lshrrev_b32", t0, 4, vl)
        b.i("v_bfe_u32", t1, vl, 2, 2)
        b.i("v_and_b32", t2, 3, vl)
        b.i("v_lshl_add_u32", t3, t0, 3, t1)
        b.i("v_lshlrev_b32", vWQA[0], 8, t3)
        b.i("v_lshl_add_u32", vWQA[0], t1, 6, vWQA[0])
        b.i("v_lshl_add_u32", vWQA[0], t2, 4, vWQA[0])
        b.i("v_add_u32", vWQA[0], WRING, vWQA[0])
        for ks in range(1, 4):
            b.i("v_xor_b32", vWQA[ks], 64 * ks, vWQA[0])
        b.i("v_lshlrev_b32", vW1A[0], 7, t3)
        b.i("v_lshl_add_u32", vW1A[0], t2, 3, vW1A[0])
        b.i("v_lshrrev_b32", t1, 1, t1)
        b.i("v_and_b32", t0, 1, t0)
        b.i("v_lshl_add_u32", t1, t0, 1, t1)
        b.i("v_lshl_add_u32", vW1A[0], t1, 5, vW1A[0])
        b.i("v_add_u32", vW1A[0], WRING + 8192, vW1A[0])
        for ft in range(1, 4):
            b.i("v_xor_b32", vW1A[ft], 32 * ft, vW1A[0])
        b.i("s_mov_b32", sMKp, sMK)
        b.i("s_mov_b32", sMVp, sMV)
        b.i("s_mov_b32", sTOFF, 0)
        b.i("s_mov_b32", sCNT, 5)
        b.i("s_mov_b32", sSC[0], f2u(128 ** -0.5 * 1.4426950408889634))
        b.i("s_mov_b32", sSC[1], f2u(128 ** -0.5 * 1.4426950408889634))
    rest()
    b.i("s_cmp_ge_u32", sWAVE, 2)
    b.i("s_cbranch_scc1", "FZ_noln")
    layernorm(b, vst, vrow, vj)
    b.label("FZ_noln")
    stamp(b, "lnE")
    FR.update(o=v(34), v=v(32), p=v(35), t=v(33))
    srd(b, sMISC, pDBG, 256)
    b.i("s_lshl_b32", sT[0], sQB, 5)
    b.i("v_mov_b32", v(36), sT[0])
    b.i("buffer_load_dword", v(37), v(36), sMISC, 0, mods="offen sc1")
    flag_addr(b, v(38))
    if TQ["on"]:
        ta, tb, tt = v(39), v(40), v(41)
        b.i("s_mul_i32", sT[0], sQB, 80)
        b.i("s_mul_i32", sT[1], sWAVE, 20)
        b.i("s_add_u32", sT[0], sT[0], sT[1])
        b.i("v_lshrrev_b32", tt, 1, vl)
        b.i("v_add_u32", tt, sT[0], tt)
        b.i("v_lshlrev_b32", ta, 13, tt)
        b.i("v_and_b32", tt, 1, vl)
        b.i("v_lshl_add_u32", ta, tt, 7, ta)
        b.i("s_lshl_b32", sT[1], sHEAD, 8)
        b.i("v_add_u32", ta, sT[1], ta)
        b.i("v_cmp_gt_u32", "vcc", 40, vl)
        b.i("v_mov_b32", tt, OOB)
        b.i("v_add_u32", tb, sT[0], vl)
        b.i("v_cndmask_b32", ta, tt, ta, "vcc")
        b.i("v_mul_u32_u24", tb, 3456, tb)
        b.i("v_cmp_gt_u32", "vcc", 20, vl)
        b.i("s_lshl_b32", sT[1], sHEAD, 7)
        b.i("v_add_u32", tb, sT[1], tb)
        b.i("v_mov_b32", v(42), sT[1])
        b.i("v_cndmask_b32", tb, tt, tb, "vcc")

    def touch_q():
        b.i("buffer_load_dword", vDUM, v(39), sWQ, 0, mods="offen")
        b.i("buffer_load_dword", vDUM, v(40), sW1, 0, mods="offen")
        srd(b, sMISC, pE, 1728 * 2)
        b.i("buffer_load_dword", vDUM, v(42), sMISC, 0, mods="offen")
    for r in range(48, 240):
        b.i("v_mov_b32", v(r), 0)
    for r in range(128):
        b.i("v_accvgpr_write_b32", a(r), 0)
    b.i("s_mov_b32", s(79), 1 << 16)
    b.label("FZ_nonce")
    b.wait(vm=0)
    b.i("v_readfirstlane_b32", sNONCE, v(37))
    b.i("s_sub_u32", s(79), s(79), 1)
    b.i("s_cmp_eq_u32", s(79), 0)
    b.i("s_cbranch_scc1", "FZ_nonce_ok")
    b.i("s_cmp_lg_u32", sNONCE, 0)
    b.i("s_cbranch_scc1", "FZ_nonce_ok")
    b.i("buffer_load_dword", v(37), v(36), sMISC, 0, mods="offen sc1")
    b.i("s_branch", "FZ_nonce")
    b.label("FZ_nonce_ok")
    set_phase(b, 1)
    if TQ["on"] == 1:
        touch_q()
    b.i("s_barrier")
    b.add(flag_store())
    if TQ["on"] == 2:
        touch_q()
    b.i("s_mov_b32", s(100), -1)
    b.i("s_mov_b32", s(101), 0)
    b.i("s_mov_b64", pF, s(100, 2))
    b.i("s_cmp_lg_u32", sWAVE, 0)
    b.i("s_cbranch_scc1", "FZ_f1_ok")
    poll_loop(b, "FZ_f1", pF, 1)
    b.i("s_barrier")
    stamp(b, "f1")
    for st in range(3):
        if st == 2:
            b.i("buffer_load_dword", vDUM, vXN, sXN, 0, mods="offen")
            wfill(3)
        for qt in range(4):
            b.add(xn_load(st, qt))
        b.i("s_add_u32", sXNo, sXNo, 131072)
    FR.update(o=vFO, v=vFV, p=vFP, t=vFT)
    for n in range(24):
        b.add(a_read(0, 0, n))
    b.wait(vm=12, lgkm=0)


R2V = [v(240 + i) for i in range(4)]
B1P = v(244, 8)


def q_epilogue(b):
    t0, t1 = v(21), v(22)
    srd_off(b, sMISC, pWS, R2_OFF, 8192)
    b.i("s_lshl_b32", sT[0], sT[2], 6)
    b.i("v_and_b32", t0, 15, v(0))
    b.i("v_lshl_add_u32", t0, t0, 2, sT[0])
    for qt in range(4):
        b.i("buffer_load_dword", R2V[qt], t0, sMISC, 0, mods=f"offen offset:{64 * qt} sc1")
    srd(b, sW1, pE, 1728 * 2)
    b.i("s_lshl_b32", sT[0], sHEAD, 7)
    b.i("v_bfe_u32", t1, v(0), 4, 2)
    b.i("v_lshl_add_u32", t1, t1, 3, sT[0])
    for ft in range(4):
        b.i("buffer_load_dwordx2", B1P.sub(2 * ft, 2), t1, sW1, 0, mods=f"offen offset:{32 * ft}")
    for j in (5, 6):
        b.i("s_add_u32", "m0", sMK, j * 8192)
        b.i("s_nop", 0)
        b.add(dma_k(0))
        b.add(dma_k(1))
        b.i("s_add_u32", "m0", sMV, j * 8192)
        b.i("s_nop", 0)
        b.add(dma_v(0))
        b.add(dma_v(1))
        b.i("s_add_u32", sTOFF, sTOFF, 8192)
    for n in range(8):
        b.add(k_read(0, n))
    for j in range(63, -1, -1):
        src = v(48 + 2 * j, 2)
        b.i("v_pk_mul_f32", src, src, sSC)
        if j < 63:
            pj = v(48 + 2 * (j + 1), 2)
            b.i("v_cvt_pk_bf16_f32", v(112 + j + 1), pj[0], pj[1])
    b.i("v_cvt_pk_bf16_f32", v(112), v(48), v(49))
    b.wait(lgkm=0)
    b.nop(2)
    qk_raw(b)
    M = [v(92 + i) for i in range(4)]
    T = [v(88 + i) for i in range(4)]
    b.nop(8)
    tile_max(b, M)
    xlane_op4(b, "v_max_f32", M, T)
    for qt in range(4):
        for r in range(4):
            b.i("v_mul_f32", NM[qt][r], -1.0, M[qt])
        b.i("v_mov_b32", L[qt], 0)


def h_epilogue(b):
    B1F = v(40, 16)
    srd_off(b, sH, pWS, H_OFF, H_SIZE)
    b.i("s_cmp_lt_u32", sHEAD, 27)
    b.i("s_cselect_b32", sH[2], H_SIZE, 0)
    b.i("s_lshl_b32", sT[0], sHEAD, 18)
    b.i("s_lshl_b32", sT[1], sT[2], 10)
    b.i("s_add_u32", sT[0], sT[0], sT[1])
    vst = v(22)
    b.i("v_and_b32", vst, 63, v(0))
    b.i("v_lshlrev_b32", vst, 4, vst)
    b.i("v_add_u32", vst, sT[0], vst)
    c1 = -2.0 * 1.4426950408889634 * 0.7978845608028654
    b.i("s_mov_b32", sC[1], 131072)
    b.i("s_mov_b32", sC[4], f2u(c1))
    b.i("s_mov_b32", sC[2], f2u(c1 * 0.044715))
    b.i("s_mov_b32", sC[3], f2u(c1 * 0.044715))
    pc3 = Reg("s", sC[2].idx, 2)
    b.wait(vm=8)
    for ft in range(4):
        lo16(b, B1F[4 * ft], B1P[2 * ft])
        hi16(b, B1F[4 * ft + 1], B1P[2 * ft])
        lo16(b, B1F[4 * ft + 2], B1P[2 * ft + 1])
        hi16(b, B1F[4 * ft + 3], B1P[2 * ft + 1])
    RV = [v(88 + 2 * i, 2) for i in range(4)]
    for qt in range(4):
        b.i("v_mov_b32", RV[qt][0], R2V[qt])
    C1 = v(104, 2)
    b.i("v_mov_b32", C1[0], sC[4])
    b.i("v_mov_b32", C1[1], sC[4])
    n = 0
    for c in range(2):
        for qt in range(4):
            U = v(56, 8)
            Wt = v(64, 8)
            pk = v(72 + 4 * (n & 3), 4)
            n += 1
            for h in range(4):
                ft, r = 2 * c + (h >> 1), 2 * (h & 1)
                b.i("v_pk_fma_f32", U.sub(2 * h, 2), HACC(qt, ft).sub(r, 2), RV[qt], B1F.sub(4 * ft + r, 2),
                    mods="op_sel_hi:[1,0,1]")
            for h in range(4):
                b.i("v_pk_mul_f32", Wt.sub(2 * h, 2), U.sub(2 * h, 2), U.sub(2 * h, 2))
            for h in range(4):
                b.i("v_pk_fma_f32", Wt.sub(2 * h, 2), Wt.sub(2 * h, 2), pc3, C1)
            for h in range(4):
                b.i("v_pk_mul_f32", Wt.sub(2 * h, 2), Wt.sub(2 * h, 2), U.sub(2 * h, 2))
            for e in range(8):
                b.i("v_exp_f32", Wt[e], Wt[e])
            for h in range(4):
                b.i("v_pk_add_f32", Wt.sub(2 * h, 2), Wt.sub(2 * h, 2), 1.0)
            for e in range(8):
                b.i("v_rcp_f32", Wt[e], Wt[e])
            for h in range(4):
                b.i("v_pk_mul_f32", U.sub(2 * h, 2), U.sub(2 * h, 2), Wt.sub(2 * h, 2))
            for h in range(4):
                b.i("v_cvt_pk_bf16_f32", pk[h], U[2 * h], U[2 * h + 1])
            b.i("buffer_store_dwordx4", pk, vst, sH, sC[1] if c else 0, mods=f"offen offset:{1024 * qt} sc1")


def after_mfma(blk, g, ins):
    n = -1
    for i, x in enumerate(blk.ins):
        if x.op.startswith("v_mfma"):
            n += 1
            if n == g:
                blk.ins[i + 1:i + 1] = ins
                return
    raise ValueError


def stamps_out(b):
    b.wait(vm=0, lgkm=0)
    srd_off(b, sMISC, pWS, 0x4000000, 1 << 20)
    b.i("s_lshl_b32", sT[0], s(2), 2)
    b.i("s_add_u32", sT[0], sT[0], sWAVE)
    b.i("s_lshl_b32", sT[0], sT[0], 6)
    b.i("v_mov_b32", v(1), sT[0])
    for k in range(len(STAMPS)):
        b.i("v_mov_b32", v(2), s(80 + 2 * k))
        b.i("buffer_store_dword", v(2), v(1), sMISC, 0, mods=f"offen offset:{4 * k}")
        b.nop(1)


def stamps_dbg(b):
    b.wait(vm=0, lgkm=0)
    ld_arg(b, s(66, 2), "dbg")
    b.wait(lgkm=0)
    srd(b, sMISC, s(66, 2), 256)
    b.i("s_cmp_eq_u32", s(2), 0)
    b.i("s_cselect_b32", sT[0], 0, OOB)
    b.i("s_cmp_eq_u32", s(2), 129)
    b.i("s_cselect_b32", sT[0], 32, sT[0])
    b.i("v_mov_b32", v(1), sT[0])
    b.i("v_mov_b32", v(3), OOB)
    b.i("v_cmp_eq_u32", "vcc", 0, v(0))
    b.nop(2)
    b.i("v_cndmask_b32", v(1), v(3), v(1), "vcc")
    for k in range(1, len(STAMPS)):
        b.i("s_sub_u32", sT[1], s(80 + 2 * k), s(80))
        b.i("v_mov_b32", v(2), sT[1])
        b.i("buffer_store_dword", v(2), v(1), sMISC, 0, mods=f"offen offset:{4 * k}")
        b.nop(1)


def build(names=(), thr=THR):
    STAMPS.clear()
    for i, n in enumerate(names):
        STAMPS[n] = i
    b = Block()
    tr = []
    pre = Block()
    setup(pre)
    b.add(pre)
    tr += pre.ins
    stamp(b, "pro0")
    b.label("K1_pro")
    steps = Block()
    for u in range(4):
        steps.add(K.pro_step(u))
    b.add(steps)
    b.i("s_cbranch_scc1", "K1_pro")
    tr += steps.ins * 5
    stamp(b, "proE")
    qe = Block()
    q_epilogue(qe)
    stamp(qe, "qE")
    P3.args(qe)
    h_epilogue(qe)
    qe.wait(lgkm=0)
    P3.addr(qe)
    if P3.TOUCH["w"]:
        P3.touch_w_addr(qe)
    flag_addr(qe, v(240))
    set_phase(qe, 2)
    qe.i("s_mov_b32", sMASK[0], -1)
    qe.i("s_mov_b32", sMASK[1], 0)
    qe.nop(2)
    stamp(qe, "hE")
    b.add(qe)
    tr += qe.ins
    it0 = A.iteration(0, g2=False, sm1_prev=False)
    b.add(it0)
    tr += it0.ins
    b.i("s_mov_b32", sCNT, 7)
    b.i("s_branch", "K1_u1")
    b.raw(".p2align 6")
    b.label("K1_loop")
    its = [A.iteration(u) for u in range(8)]
    k = next(i for i, x in enumerate(its[5].ins) if x.op.startswith("buffer_load"))
    its[5].ins.insert(k + 1, flag_store())
    k = next(i for i, x in enumerate(its[2].ins) if x.op.startswith("buffer_load"))
    its[2].ins.insert(k + 1, I("buffer_load_dword", vFT, vFP, sFLG, 0, mods="offen sc1"))
    if P3.TOUCH["w"]:
        op = P3.touch_w_open(sCNT)
        after_mfma(its[0], 20, op[0:1])
        after_mfma(its[0], 21, op[1:2])
        after_mfma(its[0], 22, op[2:3])
        for k, ld in enumerate(P3.touch_w_loads()):
            after_mfma(its[1], 19 + 4 * k, [ld])
    b.add(its[0])
    b.label("K1_u1")
    for u in range(1, 8):
        b.add(its[u])
        tr += its[u].ins
    for u in range(8):
        tr += its[u].ins
    b.i("s_sub_u32", sCNT, sCNT, 1)
    b.i("s_cmp_lg_u32", sCNT, 0)
    b.i("s_cbranch_scc1", "K1_loop")
    e = Block()
    poll_test(e, sMASK, 2)
    e.i("s_cbranch_scc1", "FZ_f2_ok")
    b.add(e)
    tr += e.ins
    sl = Block()
    poll_loop(sl, "FZ_f2", sMASK, 2)
    b.add(sl)
    eo = P3.early_ops()
    for u in range(8):
        it = A.iteration(u, dict(xmem=eo[4 * u - 4:4 * u]) if u else None)
        b.add(it)
        tr += it.ins
    e = Block()
    stamp(e, "loopE")
    e.nop(1)
    K.tail(e)
    T4 = [v(88 + i) for i in range(4)]
    xlane_op4(e, "v_add_f32", L, T4)
    e.i("s_mov_b32", sT[0], f2u(thr))
    cc = [s(56 + 2 * i, 2) for i in range(4)]
    for i in range(4):
        e.i("v_cmp_nle_f32", cc[i], L[i], sT[0])
    e.nop(2)
    e.i("s_or_b64", cc[0], cc[0], cc[1])
    e.i("s_or_b64", cc[2], cc[2], cc[3])
    e.i("s_or_b64", cc[0], cc[0], cc[2])
    e.i("s_cmp_lg_u64", cc[0], 0)
    e.i("s_cselect_b32", sT[0], 1, 0)
    e.i("s_lshl_b32", sT[1], sWAVE, 2)
    e.i("v_mov_b32", T4[0], sT[0])
    e.i("v_mov_b32", T4[1], sT[1])
    e.i("v_add_u32", T4[1], 150 * 1024, T4[1])
    e.i("ds_write_b32", T4[1], T4[0])
    e.i("v_mov_b32", T4[1], 150 * 1024)
    stamp(e, "tailE")
    e.wait(vm=0, lgkm=0)
    stamp(e, "tailW")
    e.i("s_barrier")
    e.i("ds_read_b128", v(104, 4), T4[1])
    e.wait(lgkm=0)
    e.i("v_or3_b32", T4[0], v(104), v(105), v(106))
    e.i("v_or_b32", T4[0], T4[0], v(107))
    e.nop(1)
    e.i("v_readfirstlane_b32", sT[0], T4[0])
    e.i("s_cmp_lg_u32", sT[0], 0)
    e.i("s_cbranch_scc1", "K1_fb")
    e.label("K1_norm")
    stamp(e, "safe")
    b.add(e)
    tr += e.ins
    oe = Block()
    K.o_head(oe)
    stamp(oe, "oE")
    pb, ptr, info = P3.build(oe, K.o_chunks())
    b.add(pb)
    tr += ptr
    if STAMPS:
        (stamps_dbg if OPT.get("dbg") else stamps_out)(b)
    b.wait(vm=0)
    b.label("FZ_end")
    b.i("s_endpgm")
    def redo(x):
        P3.early_burst(x)
        x.wait(vm=0)
        x.i("s_barrier")
    K.fallback(b, t0=100, end_barrier=True, post=redo)
    check(tr, "FZ")
    if OPT.get("verbose"):
        print(info)
    return b


def make(names=(), thr=THR):
    b = build(names, thr)
    return assemble_file([dict(label=NAME + "_kernel", grid=256, block=256, lds=163840, body=b.text(), nvgpr=512,
                               accum=256)])


if __name__ == "__main__":
    out = sys.argv[1]
    names = []
    thr = THR
    for x in sys.argv[2:]:
        if x.startswith("st="):
            names = x[3:].split(",")
        elif x == "fb":
            thr = -1.0
        elif x.startswith("nt="):
            for c in x[3:]:
                P3.TOUCH[c] = 0
        elif x.startswith("tq="):
            TQ["on"] = int(x[3:])
        elif x == "dbg":
            OPT["dbg"] = 1
        elif x == "v":
            OPT["verbose"] = 1
    open(out, "w").write(make(names, thr))
```
